```python
import torch

def _softmax(x, axis=-1):
    return torch.softmax(x, dim=axis)

def _gelu(x):
    return torch.nn.functional.gelu(x, approximate='tanh')

def _silu(x):
    return torch.nn.functional.silu(x)

def _sigmoid(x):
    return torch.sigmoid(x)

def _layernorm(x, axis=-1, eps=1e-05):
    m = x.mean(dim=axis, keepdim=True)
    v = x.var(dim=axis, keepdim=True, unbiased=False)
    return (x - m) / torch.sqrt(v + eps)

def _scatter_add(tgt, idx, src, axis=0):
    return tgt.clone().index_add_(axis, idx, src)

def _segment_sum(src, seg, n):
    out = torch.zeros((n,) + src.shape[1:], dtype=src.dtype)
    return out.index_add_(0, seg, src)

def _pad(x, pw):
    flat = tuple((v for pair in reversed(pw) for v in pair))
    return torch.nn.functional.pad(x, flat)
kernel_name = 'adaLN_cond__ssm_conv_h3__mixer_gmlp__prompt'

def setup_inputs():

    _w = lambda a: (lambda t: t.to(torch.bfloat16) if t.is_floating_point() else t)(torch.as_tensor(a))

    def _A_setup():
        B, S, D = (1, 2048, 448)
        ks = 4
        return {'q': _w((lambda *s: torch.randn(*s, dtype=torch.bfloat16) * 0.05)(B, S, D)), 'k': _w((lambda *s: torch.randn(*s, dtype=torch.bfloat16) * 1.6)(B, S, D)), 'v': _w((lambda *s: torch.randn(*s, dtype=torch.bfloat16) * 1.6)(B, S, D)), 'shift_k': _w((lambda *s: torch.randn(*s, dtype=torch.bfloat16) * 1.6)(D, ks) * 0.5), 'ssm_k': _w((lambda *s: torch.randn(*s, dtype=torch.bfloat16) * 1.6)(D, S) * (1.0 / S ** 0.5)), 'ssm_D': _w((lambda *s: torch.randn(*s, dtype=torch.bfloat16) * 1.6)(D))}
    _A_in = _A_setup()

    def _B_setup():
        B, S, D, F = (1, 2048, 448, 1792)
        Fh = F // 2
        return {'x': _w((lambda *s: torch.randn(*s, dtype=torch.bfloat16) * 0.05)(B, S, D)), 'w_in': _w((lambda *s: torch.randn(*s, dtype=torch.bfloat16) * 0.8)(D, 2 * Fh)), 'w_sp': _w(0.01 * (lambda *s: torch.randn(*s, dtype=torch.bfloat16) * 0.8)(S, S)), 'b_sp': _w(1.0 + 0.01 * (lambda *s: torch.randn(*s, dtype=torch.bfloat16) * 0.1)(S)), 'w_out': _w((lambda *s: torch.randn(*s, dtype=torch.bfloat16) * 0.1)(Fh, D))}
    _B_in = _B_setup()
    return {'A_q': _A_in['q'], 'A_k': _A_in['k'], 'A_v': _A_in['v'], 'A_shift_k': _A_in['shift_k'], 'A_ssm_k': _A_in['ssm_k'], 'A_ssm_D': _A_in['ssm_D'], 'B_x': _B_in['x'], 'B_w_in': _B_in['w_in'], 'B_w_sp': _B_in['w_sp'], 'B_b_sp': _B_in['b_sp'], 'B_w_out': _B_in['w_out'], 'c': _w((lambda *s: torch.randn(*s, dtype=torch.bfloat16) * 0.1)(1, 448) * 8.0), 'w_mod': _w((lambda *s: torch.randn(*s, dtype=torch.bfloat16) * 0.1)(448, 6 * 448) * 448 ** (-0.5) * 8.0)}

def reference(A_q, A_k, A_v, A_shift_k, A_ssm_k, A_ssm_D, B_x, B_w_in, B_w_sp, B_b_sp, B_w_out, c, w_mod):

    def _A_ref(q, k, v, shift_k, ssm_k, ssm_D):
        B, S, D = q.shape
        ks = shift_k.shape[-1]
        k_pad = _pad(k, ((0, 0), (ks - 1, 0), (0, 0)))
        k_shift = torch.zeros_like(k)
        for t in range(ks):
            k_shift = k_shift + k_pad[:, t:t + S, :] * shift_k[:, ks - 1 - t][None, None, :]
        kv = k_shift * v
        L = 2 * S
        kv_pad = _pad(kv, ((0, 0), (0, S), (0, 0)))
        kf_pad = _pad(ssm_k, ((0, 0), (0, S)))
        kv_f = (lambda x, axes=(-2, -1): torch.fft.rfft2(x.float(), dim=axes))(kv_pad[:, None, :, :], axes=(1, 2))
        kf_f = (lambda x, axes=(-2, -1): torch.fft.rfft2(x.float(), dim=axes))(kf_pad[:, None, :], axes=(1, 2))
        kf_f = (lambda x, *d: x.permute(*d))(kf_f, 1, 2, 0)
        y_f = kv_f * kf_f[None, :, :, :]
        y = (lambda x, s, axes=(-2, -1): torch.fft.irfft2(x, s=s, dim=axes).to(torch.bfloat16))(y_f, (1, L), axes=(1, 2))[:, 0, :S, :]
        y = y + kv * ssm_D[None, None, :]
        return q * y

    def _B_ref(x, w_in, w_sp, b_sp, w_out):
        B, S, D = x.shape
        F = w_in.shape[-1]
        Fh = F // 2
        z = _gelu(torch.einsum('bsd,df->bsf', x, w_in))
        z1 = z[..., :Fh].clone()
        z2 = _layernorm(z[..., Fh:], axis=-1)
        g = torch.einsum('ts,bsf->btf', w_sp, z2) + b_sp[None, :, None]
        return torch.einsum('bsf,fd->bsd', z1 * g, w_out)
    x = A_q
    mod = (_silu(c) @ w_mod).reshape(c.shape[0], 6, 1, -1)
    sa, ca, ga, sb, cb, gb = (mod[:, 0].clone(), mod[:, 1].clone(), mod[:, 2].clone(), mod[:, 3].clone(), mod[:, 4].clone(), mod[:, 5].clone())
    h = _layernorm(x, axis=-1) * (1 + ca) + sa
    x = x + ga * _A_ref(h, A_k, A_v, A_shift_k, A_ssm_k, A_ssm_D)
    h = _layernorm(x, axis=-1) * (1 + cb) + sb
    x = x + gb * _B_ref(h, B_w_in, B_w_sp, B_b_sp, B_w_out)
    return x
```

```python
class Asm:
    def __init__(self):
        self.l = []
    def __call__(self, s):
        self.l.append("    " + s)
    def label(self, s):
        self.l.append(s + ":")
    def raw(self, s):
        self.l.append(s)
    def text(self):
        return "\n".join(self.l)

KA = dict(q=0, k=8, v=16, shift_k=24, ssm_k=32, ssm_D=40, B_x=48, w_in=56, w_sp=64,
          b_sp=72, w_out=80, c=88, w_mod=96, out=104, debug=112, ws=120)
WS_MOD   = 0x0
WS_YT    = 0x4000
WS_WINT  = 0x1C4000
WS_WOUTT = 0x34C000
WS_X1    = 0x410000
WS_Z1    = 0x5D0000
WS_Z2T   = 0x950000
WS_STAT  = 0xCD0000
WS_P     = 0xCD8000
WS_SIZE  = 268435456

def srd(a, sd, sbase, nbytes):
    a(f"s_mov_b32 s{sd}, s{sbase}")
    a(f"s_and_b32 s{sd+1}, s{sbase+1}, 0xffff")
    a(f"s_mov_b32 s{sd+2}, {nbytes}")
    a(f"s_mov_b32 s{sd+3}, 0x00020000")

def kernel_begin(a, name):
    a.raw(f".globl {name}")
    a.raw(".p2align 8")
    a.raw(f".type {name},@function")
    a.label(name)

def kernel_desc(name, vgpr, sgpr=102, accum=None):
    if accum is None:
        accum = (vgpr + 3) // 4 * 4
    return f""".p2align 6
.amdhsa_kernel {name}
  .amdhsa_next_free_vgpr {vgpr}
  .amdhsa_next_free_sgpr {sgpr}
  .amdhsa_accum_offset {accum}
  .amdhsa_group_segment_fixed_size 0
  .amdhsa_kernarg_size 128
  .amdhsa_user_sgpr_count 2
  .amdhsa_user_sgpr_kernarg_segment_ptr 1
  .amdhsa_system_sgpr_workgroup_id_x 1
.end_amdhsa_kernel
"""
def fbits(x):
    import struct
    return "0x%08x" % struct.unpack("<I", struct.pack("<f", x))[0]
```

```python
from common import *

NCONV, NMOD, NTIN, NTOUT = 224, 21, 196, 98
K1_GRID = NCONV + NMOD + NTIN + NTOUT
XC = 4416
XCH = 8 * XC
UB = 2 * XCH
UCH = 96 * 80
K1_LDS = UB + 2 * UCH

def gen_k1(a):
    name = "k1_conv_kernel"
    kernel_begin(a, name)
    a("s_cmp_ge_u32 s2, %d" % K1_GRID)
    a("s_cbranch_scc1 K1_END")
    a("s_cmp_ge_u32 s2, %d" % (NCONV + NMOD))
    a("s_cbranch_scc1 K1_TRANS")
    a("s_cmp_ge_u32 s2, %d" % NCONV)
    a("s_cbranch_scc1 K1_MOD")
    a("s_load_dwordx4 s[4:7], s[0:1], %d" % KA['k'])
    a("s_load_dwordx4 s[8:11], s[0:1], %d" % KA['shift_k'])
    a("s_load_dwordx2 s[12:13], s[0:1], %d" % KA['ssm_D'])
    a("s_load_dwordx2 s[14:15], s[0:1], %d" % KA['ws'])
    a("s_lshl_b32 s40, s2, 4")
    a("s_lshl_b32 s41, s2, 2")
    a("s_waitcnt lgkmcnt(0)")
    a("s_load_dwordx4 s[32:35], s[8:9], s40")
    a("s_load_dword s36, s[12:13], s41")
    srd(a, 16, 4, 1835008)
    srd(a, 20, 6, 1835008)
    srd(a, 24, 10, 1835008)
    srd(a, 28, 14, WS_SIZE)
    a("v_mul_u32_u24 v1, 7168, v0")
    a("v_add_u32 v1, s41, v1")
    a("s_mov_b32 s42, 0x7ffffff0")
    for j in range(11):
        if j < 3:
            a(f"v_add_u32 v2, {(j-3)*896 & 0xffffffff}, v1")
            a("v_cmp_gt_i32 vcc, 0, v2")
            a("v_mov_b32 v3, s42")
            a("v_cndmask_b32 v2, v2, v3, vcc")
            a(f"buffer_load_dword v{10+j}, v2, s[16:19], 0 offen")
        else:
            a(f"v_add_u32 v2, {(j-3)*896}, v1")
            a(f"buffer_load_dword v{10+j}, v2, s[16:19], 0 offen")
    for j in range(8):
        a(f"v_add_u32 v2, {j*896}, v1")
        a(f"buffer_load_dword v{21+j}, v2, s[20:23], 0 offen")
    a("s_lshl_b32 s43, s2, 13")
    a("v_lshlrev_b32 v4, 4, v0")
    a("v_add_u32 v4, s43, v4")
    a("v_subrev_u32 v5, 16, v4")
    a("v_cmp_eq_u32 vcc, 0, v0")
    a("v_mov_b32 v3, s42")
    a("v_cndmask_b32 v5, v5, v3, vcc")
    a("buffer_load_dwordx4 v[30:33], v5, s[24:27], 0 offen")
    a("buffer_load_dwordx4 v[34:37], v4, s[24:27], 0 offen")
    a("v_add_u32 v6, 4096, v4")
    a("v_add_u32 v5, 4096, v5")
    a("v_cndmask_b32 v5, v5, v3, vcc")
    a("buffer_load_dwordx4 v[38:41], v5, s[24:27], 0 offen")
    a("buffer_load_dwordx4 v[42:45], v6, s[24:27], 0 offen")
    a("v_mov_b32 v46, 0"); a("v_mov_b32 v47, 0"); a("v_mov_b32 v48, 0"); a("v_mov_b32 v49, 0")
    a("v_lshlrev_b32 v6, 4, v0")
    a("v_cmp_gt_u32 vcc, 160, v0")
    a("s_and_saveexec_b64 s[44:45], vcc")
    a(f"v_add_u32 v7, {UB}, v6")
    a(f"ds_write_b128 v7, v[46:49]")
    a(f"ds_write_b128 v7, v[46:49] offset:{UCH}")
    a("s_mov_b64 exec, s[44:45]")
    a("v_cmp_gt_u32 vcc, 48, v0")
    a("s_and_saveexec_b64 s[44:45], vcc")
    a("v_mul_u32_u24 v6, 0x5556, v0"); a("v_lshrrev_b32 v6, 16, v6")
    a("v_mul_u32_u24 v7, 3, v6"); a("v_sub_u32 v7, v0, v7")
    a(f"v_mul_u32_u24 v6, {XC}, v6")
    a("v_lshlrev_b32 v7, 4, v7"); a("v_add_u32 v6, v6, v7")
    a("ds_write_b128 v6, v[46:49] offset:4096")
    a("s_mov_b64 exec, s[44:45]")
    a("s_waitcnt lgkmcnt(0)")
    for ch in range(2):
        a(f"s_lshl_b32 s{44+4*ch}, s{32+2*ch}, 16")
        a(f"s_and_b32 s{45+4*ch}, s{32+2*ch}, 0xffff0000")
        a(f"s_lshl_b32 s{46+4*ch}, s{33+2*ch}, 16")
        a(f"s_and_b32 s{47+4*ch}, s{33+2*ch}, 0xffff0000")
    a("s_lshl_b32 s52, s36, 16")
    a("s_and_b32 s53, s36, 0xffff0000")
    a("s_waitcnt vmcnt(4)")
    for j in range(11):
        a(f"v_lshlrev_b32 v{50+j}, 16, v{10+j}")
        a(f"v_and_b32 v{61+j}, 0xffff0000, v{10+j}")
    def rnd2(d, x0, x1, o0, o1):
        a(f"v_cvt_pk_bf16_f32 v{d}, v{x0}, v{x1}")
        a(f"v_lshlrev_b32 v{o0}, 16, v{d}")
        a(f"v_and_b32 v{o1}, 0xffff0000, v{d}")
    for i in range(8):
        a(f"v_mul_f32 v90, s47, v{50+i}")
        a(f"v_mul_f32 v91, s51, v{61+i}")
        rnd2(92, 90, 91, 90, 91)
        for tap, sj in ((1, 2), (2, 1), (3, 0)):
            a(f"v_mul_f32 v93, s{44+sj}, v{50+i+tap}")
            a(f"v_mul_f32 v94, s{48+sj}, v{61+i+tap}")
            rnd2(92, 93, 94, 93, 94)
            a("v_add_f32 v90, v90, v93")
            a("v_add_f32 v91, v91, v94")
            rnd2(92, 90, 91, 90, 91)
        a(f"v_lshlrev_b32 v93, 16, v{21+i}")
        a(f"v_and_b32 v94, 0xffff0000, v{21+i}")
        a(f"v_mul_f32 v{72+i}, v90, v93")
        a(f"v_mul_f32 v{80+i}, v91, v94")
    for ch in range(2):
        for j in range(4):
            a(f"v_cvt_pk_bf16_f32 v{88+4*ch+j}, v{72+8*ch+2*j}, v{73+8*ch+2*j}")
    a("v_lshrrev_b32 v6, 2, v0"); a("v_mul_u32_u24 v6, 80, v6")
    a("v_and_b32 v7, 3, v0"); a("v_lshlrev_b32 v7, 4, v7"); a("v_add_u32 v6, v6, v7")
    a(f"v_add_u32 v6, {UB}, v6")
    a(f"ds_write_b128 v6, v[88:91] offset:{2560}")
    a(f"ds_write_b128 v6, v[92:95] offset:{UCH+2560}")
    a("s_waitcnt vmcnt(0)")
    a("v_sub_u32 v6, 255, v0"); a("v_lshlrev_b32 v6, 4, v6")
    for ch in range(2):
        W = 30 + 8 * ch
        for j in range(8):
            a(f"v_alignbit_b32 v{50+j}, v{W+7-j}, v{W+7-j}, 16")
        for j in range(7):
            a(f"v_mov_b32 v{60+j}, v{51+j}")
            a(f"v_alignbit_b32 v{70+j}, v{51+j}, v{50+j}, 16")
        for j in range(6):
            a(f"v_mov_b32 v{80+j}, v{71+j}")
        for c in range(8):
            j = c // 2
            if c % 2 == 0:
                reg = (50 + j) if j % 2 == 0 else (60 + j - 1)
            else:
                reg = (70 + j) if j % 2 == 0 else (80 + j - 1)
            o = ch*XCH + c*XC
            if o >= 65536: a("v_add_u32 v7, 0x8000, v6")
            a(f"ds_write_b128 v{6 if o < 65536 else 7}, v[{reg}:{reg+3}] offset:{o if o < 65536 else o - 0x8000}")
    a("s_waitcnt lgkmcnt(0)")
    a("s_barrier")
    a("v_lshrrev_b32 v1, 6, v0")
    a("s_nop 0")
    a("v_readfirstlane_b32 s54, v1")
    a("s_lshr_b32 s55, s54, 1")
    a("s_and_b32 s56, s54, 1")
    a("v_and_b32 v1, 63, v0")
    a("v_and_b32 v2, 31, v1")
    a("v_lshrrev_b32 v3, 5, v1")
    a("v_sub_u32 v4, 7, v2"); a("v_and_b32 v4, 7, v4")
    a(f"v_mul_u32_u24 v4, {XC}, v4")
    a("v_lshrrev_b32 v5, 3, v2"); a("v_sub_u32 v5, v3, v5"); a("v_add_u32 v5, 255, v5"); a("v_lshlrev_b32 v5, 4, v5")
    a("v_add_u32 v4, v4, v5")
    a(f"s_mul_i32 s57, s55, {XCH}")
    a("v_add_u32 v4, s57, v4")
    a("s_lshl_b32 s58, s56, 5"); a("s_add_u32 s58, s58, 32")
    a("v_add_u32 v5, s58, v2"); a("v_mul_u32_u24 v5, 80, v5")
    a("v_lshlrev_b32 v6, 4, v3"); a("v_add_u32 v5, v5, v6")
    a(f"s_mul_i32 s57, s55, {UCH}"); a(f"s_add_u32 s57, s57, {UB}")
    a("v_add_u32 v5, s57, v5")
    for r in range(16):
        a(f"v_mov_b32 v{100+r}, 0")
    a("s_lshl_b32 s59, s56, 5"); a("s_add_u32 s59, s59, 32")
    def rd(s):
        b = 10 + 16 * s
        a(f"ds_read_b128 v[{b}:{b+3}], v4")
        a(f"ds_read_b128 v[{b+4}:{b+7}], v4 offset:32")
        a(f"ds_read_b128 v[{b+8}:{b+11}], v5")
        a(f"ds_read_b128 v[{b+12}:{b+15}], v5 offset:32")
        a("v_subrev_u32 v4, 64, v4")
        a("v_subrev_u32 v5, 80, v5")
    def mm(s):
        b = 10 + 16 * s
        a(f"v_mfma_f32_32x32x16_bf16 v[100:115], v[{b}:{b+3}], v[{b+8}:{b+11}], v[100:115]")
        a(f"v_mfma_f32_32x32x16_bf16 v[100:115], v[{b+4}:{b+7}], v[{b+12}:{b+15}], v[100:115]")
    rd(0)
    a.label("K1_LOOP")
    rd(1)
    a("s_waitcnt lgkmcnt(4)")
    mm(0)
    rd(0)
    a("s_waitcnt lgkmcnt(4)")
    mm(1)
    a("s_sub_u32 s59, s59, 2")
    a("s_cmp_gt_u32 s59, 0")
    a("s_cbranch_scc1 K1_LOOP")
    a("s_waitcnt lgkmcnt(0)")
    a("s_nop 15"); a("s_nop 7")
    a("v_add_u32 v5, s58, v2"); a("v_mul_u32_u24 v5, 80, v5")
    a("v_lshlrev_b32 v6, 3, v3"); a("v_add_u32 v5, v5, v6"); a("v_add_u32 v5, s57, v5")
    for g in range(4):
        a(f"ds_read_b64 v[{10+2*g}:{11+2*g}], v5 offset:{16*g}")
    a("s_lshl_b32 s60, s2, 1"); a("s_add_u32 s60, s60, s55"); a("s_lshl_b32 s60, s60, 12"); a(f"s_add_u32 s60, s60, {WS_YT}")
    a("s_sub_u32 s61, s58, 32")
    a("v_add_u32 v6, s61, v2"); a("v_lshlrev_b32 v6, 6, v6"); a("v_lshlrev_b32 v7, 3, v3"); a("v_add_u32 v6, v6, v7")
    a("s_cmp_eq_u32 s55, 0"); a("s_cselect_b32 s62, s52, s53")
    a("s_waitcnt lgkmcnt(0)")
    for g in range(4):
        for p in range(2):
            r0 = 100 + 4 * g + 2 * p
            kvd = 10 + 2 * g + p
            a(f"v_lshlrev_b32 v20, 16, v{kvd}"); a(f"v_and_b32 v21, 0xffff0000, v{kvd}")
            a("v_mul_f32 v20, s62, v20"); a("v_mul_f32 v21, s62, v21")
            rnd2(22, 20, 21, 20, 21)
            rnd2(22, r0, r0 + 1, 24, 25)
            a("v_add_f32 v20, v20, v24"); a("v_add_f32 v21, v21, v25")
            a(f"v_cvt_pk_bf16_f32 v{30+2*g+p}, v20, v21")
        a(f"buffer_store_dwordx2 v[{30+2*g}:{31+2*g}], v6, s[28:31], s60 offen offset:{16*g}")
    a("s_branch K1_END")

    a.label("K1_MOD")
    a("s_load_dwordx4 s[4:7], s[0:1], %d" % KA['c'])
    a("s_load_dwordx2 s[14:15], s[0:1], %d" % KA['ws'])
    a(f"s_sub_u32 s3, s2, {NCONV}")
    a("s_waitcnt lgkmcnt(0)")
    srd(a, 16, 4, 896)
    srd(a, 20, 6, 448 * 5376)
    srd(a, 28, 14, WS_SIZE)
    a("v_lshlrev_b32 v1, 2, v0")
    a("buffer_load_dword v2, v1, s[16:19], 0 offen")
    a("s_mov_b32 s40, " + fbits(-1.4426950408889634))
    a("s_waitcnt vmcnt(0)")
    a("v_lshlrev_b32 v3, 16, v2"); a("v_and_b32 v4, 0xffff0000, v2")
    for r in (3, 4):
        a(f"v_mul_f32 v5, s40, v{r}"); a("v_exp_f32 v5, v5"); a("s_nop 0"); a("v_add_f32 v5, 1.0, v5")
        a("v_rcp_f32 v5, v5"); a("s_nop 0"); a(f"v_mul_f32 v{r}, v{r}, v5")
    a("v_cvt_pk_bf16_f32 v5, v3, v4"); a("v_lshlrev_b32 v6, 16, v5"); a("v_and_b32 v7, 0xffff0000, v5")
    a("v_lshlrev_b32 v1, 3, v0")
    a("ds_write_b64 v1, v[6:7]")
    a("s_waitcnt lgkmcnt(0)"); a("s_barrier")
    a("v_lshrrev_b32 v1, 6, v0"); a("s_nop 0"); a("v_readfirstlane_b32 s54, v1")
    a("v_and_b32 v1, 63, v0")
    a("s_mul_i32 s55, s54, 112")
    a("s_lshl_b32 s56, s3, 8")
    a("v_lshlrev_b32 v2, 2, v1"); a("v_add_u32 v2, s56, v2")
    a("s_mul_i32 s57, s55, 5376"); a("v_add_u32 v2, s57, v2")
    a("s_lshl_b32 s58, s55, 2"); a("v_mov_b32 v3, s58")
    a("v_mov_b32 v4, 0"); a("v_mov_b32 v5, 0")
    a("s_mov_b32 s59, 14")
    a.label("K1_MODLOOP")
    a("ds_read_b128 v[8:11], v3"); a("ds_read_b128 v[12:15], v3 offset:16")
    for i in range(8):
        a(f"v_add_u32 v6, {i*5376}, v2")
        a(f"buffer_load_dword v{16+i}, v6, s[20:23], 0 offen")
    a("v_add_u32 v2, %d, v2" % (8 * 5376)); a("v_add_u32 v3, 32, v3")
    a("s_waitcnt vmcnt(0) lgkmcnt(0)")
    for i in range(8):
        a(f"v_lshlrev_b32 v6, 16, v{16+i}"); a(f"v_and_b32 v7, 0xffff0000, v{16+i}")
        a(f"v_fmac_f32 v4, v{8+i}, v6"); a(f"v_fmac_f32 v5, v{8+i}, v7")
    a("s_sub_u32 s59, s59, 1"); a("s_cmp_gt_u32 s59, 0"); a("s_cbranch_scc1 K1_MODLOOP")
    a("v_lshlrev_b32 v6, 3, v0")
    a("ds_write_b64 v6, v[4:5] offset:2048")
    a("s_waitcnt lgkmcnt(0)"); a("s_barrier")
    a("v_cmp_gt_u32 vcc, 64, v0")
    a("s_and_saveexec_b64 s[44:45], vcc")
    a("s_cbranch_execz K1_END")
    for w in range(4):
        a(f"ds_read_b64 v[{8+2*w}:{9+2*w}], v6 offset:{2048+512*w}")
    a("s_waitcnt lgkmcnt(0)")
    a("v_add_f32 v4, v8, v10"); a("v_add_f32 v4, v4, v12"); a("v_add_f32 v4, v4, v14")
    a("v_add_f32 v5, v9, v11"); a("v_add_f32 v5, v5, v13"); a("v_add_f32 v5, v5, v15")
    a("v_cvt_pk_bf16_f32 v6, v4, v5"); a("v_lshlrev_b32 v4, 16, v6"); a("v_and_b32 v5, 0xffff0000, v6")
    a("s_lshl_b32 s56, s3, 7"); a("v_lshlrev_b32 v7, 1, v0"); a("v_add_u32 v7, s56, v7")
    a("v_add_f32 v8, 1.0, v4"); a("v_add_f32 v9, 1.0, v5")
    a("v_cvt_pk_bf16_f32 v6, v8, v9"); a("v_lshlrev_b32 v8, 16, v6"); a("v_and_b32 v9, 0xffff0000, v6")
    a("v_subrev_u32 v10, 448, v7"); a("v_cmp_gt_u32 vcc, 448, v10")
    a("v_subrev_u32 v10, 1792, v7"); a("s_movk_i32 s48, 448"); a("v_cmp_gt_u32 s[46:47], s48, v10"); a("s_or_b64 vcc, vcc, s[46:47]")
    a("s_nop 1")
    a("v_cndmask_b32 v4, v4, v8, vcc"); a("v_cndmask_b32 v5, v5, v9, vcc")
    a("v_lshlrev_b32 v7, 2, v7")
    a(f"buffer_store_dwordx2 v[4:5], v7, s[28:31], 0 offen offset:{WS_MOD}")
    a("s_branch K1_END")

    a.label("K1_TRANS")
    a("s_load_dwordx2 s[4:5], s[0:1], %d" % KA['w_in'])
    a("s_load_dwordx2 s[6:7], s[0:1], %d" % KA['w_out'])
    a("s_load_dwordx2 s[14:15], s[0:1], %d" % KA['ws'])
    a(f"s_sub_u32 s3, s2, {NCONV+NMOD}")
    a("s_waitcnt lgkmcnt(0)")
    srd(a, 28, 14, WS_SIZE)
    a(f"s_cmp_ge_u32 s3, {NTIN}")
    a("s_cbranch_scc1 K1_TOUT")
    srd(a, 16, 4, 448 * 3584)
    a("s_mov_b32 s40, 4793491"); a("s_mov_b32 s41, 896"); a("s_mov_b32 s42, 3584"); a("s_mov_b32 s43, 896"); a(f"s_mov_b32 s44, {WS_WINT}")
    a("s_branch K1_TGO")
    a.label("K1_TOUT")
    a(f"s_sub_u32 s3, s3, {NTIN}")
    srd(a, 16, 6, 896 * 896)
    a("s_mov_b32 s40, 19173962"); a("s_mov_b32 s41, 224"); a("s_mov_b32 s42, 896"); a("s_mov_b32 s43, 1792"); a(f"s_mov_b32 s44, {WS_WOUTT}")
    a.label("K1_TGO")
    a("s_lshl_b32 s45, s3, 8"); a("v_add_u32 v1, s45, v0")
    a("v_mul_hi_u32 v2, v1, s40")
    a("v_mul_lo_u32 v3, v2, s41"); a("v_sub_u32 v3, v1, v3")
    a("v_mul_lo_u32 v4, v2, s42"); a("v_lshlrev_b32 v4, 3, v4"); a("v_lshlrev_b32 v5, 2, v3"); a("v_add_u32 v4, v4, v5")
    for i in range(8):
        if i: a("v_add_u32 v4, s42, v4")
        a(f"buffer_load_dword v{10+i}, v4, s[16:19], 0 offen")
    a("v_mul_lo_u32 v5, v3, s43"); a("v_lshlrev_b32 v5, 1, v5"); a("v_lshlrev_b32 v6, 4, v2"); a("v_add_u32 v5, v5, v6")
    a("s_mov_b32 s46, 0xffff0000")
    a("s_waitcnt vmcnt(0)")
    for j in range(4):
        a(f"v_and_b32 v7, 0xffff, v{10+2*j}"); a(f"v_lshl_or_b32 v{20+j}, v{11+2*j}, 16, v7")
        a(f"v_lshrrev_b32 v7, 16, v{10+2*j}"); a(f"v_and_or_b32 v{24+j}, v{11+2*j}, s46, v7")
    a("buffer_store_dwordx4 v[20:23], v5, s[28:31], s44 offen")
    a("v_add_u32 v5, s43, v5")
    a("buffer_store_dwordx4 v[24:27], v5, s[28:31], s44 offen")
    a.label("K1_END")
    a("s_endpgm")
    return name, 128
```

```python
from common import *
AS = 928
K2_MODL = 32 * AS
K2_STAT = K2_MODL + 10752
K2_LDS = K2_STAT + 4 * 32 * 8

def gen_k2(a):
    name = "k2_gemm1_kernel"
    kernel_begin(a, name)
    a("s_cmp_ge_u32 s2, 256"); a("s_cbranch_scc1 K2_END")
    a("s_load_dwordx2 s[4:5], s[0:1], %d" % KA['q'])
    a("s_load_dwordx2 s[14:15], s[0:1], %d" % KA['ws'])
    a("s_and_b32 s40, s2, 3")
    a("s_lshr_b32 s41, s2, 2")
    a("s_lshl_b32 s42, s41, 5")
    a("s_waitcnt lgkmcnt(0)")
    srd(a, 16, 4, 1835008)
    srd(a, 28, 14, WS_SIZE)
    a("v_lshrrev_b32 v1, 3, v0")
    a("v_and_b32 v2, 7, v0")
    a("v_add_u32 v3, s42, v1"); a("v_mul_u32_u24 v3, 896, v3"); a("v_mul_u32_u24 v4, 112, v2"); a("v_add_u32 v3, v3, v4")
    for i in range(7):
        a(f"buffer_load_dwordx4 v[{100+4*i}:{103+4*i}], v3, s[16:19], 0 offen offset:{16*i}")
    a("v_lshrrev_b32 v5, 2, v0"); a("v_lshlrev_b32 v5, 12, v5"); a("v_and_b32 v6, 3, v0"); a("v_lshlrev_b32 v6, 4, v6"); a("v_add_u32 v5, v5, v6")
    a(f"s_lshl_b32 s43, s42, 1"); a(f"s_add_u32 s43, s43, {WS_YT}")
    for i in range(7):
        a(f"v_add_u32 v6, {i*64*4096}, v5")
        a(f"buffer_load_dwordx4 v[{130+4*i}:{133+4*i}], v6, s[28:31], s43 offen")
    a("v_lshlrev_b32 v7, 4, v0")
    for i in range(3):
        a(f"buffer_load_dwordx4 v[{160+4*i}:{163+4*i}], v7, s[28:31], 0 offen offset:{WS_MOD + 4096*i}" if i == 0 else
          f"v_add_u32 v8, {4096*i}, v7")
        if i:
            a(f"buffer_load_dwordx4 v[{160+4*i}:{163+4*i}], v8, s[28:31], 0 offen")
    a("v_and_b32 v6, 3, v0"); a(f"v_mul_u32_u24 v6, {8*AS}, v6"); a("v_lshrrev_b32 v8, 2, v0"); a("v_lshlrev_b32 v8, 1, v8"); a("v_add_u32 v6, v6, v8")
    a("s_waitcnt vmcnt(3)")
    for it in range(7):
        for j in range(4):
            a(f"ds_write_b16 v6, v{130+4*it+j} offset:{128*it + (2*j)*AS}")
            a(f"ds_write_b16_d16_hi v6, v{130+4*it+j} offset:{128*it + (2*j+1)*AS}")
    a("s_waitcnt vmcnt(0)")
    a(f"v_add_u32 v7, {K2_MODL}, v7")
    a("ds_write_b128 v7, v[160:163]"); a("ds_write_b128 v7, v[164:167] offset:4096")
    a("v_cmp_gt_u32 vcc, 160, v0"); a("s_and_saveexec_b64 s[44:45], vcc")
    a("ds_write_b128 v7, v[168:171] offset:8192")
    a("s_mov_b64 exec, s[44:45]")
    a("s_waitcnt lgkmcnt(0)"); a("s_barrier")
    X = 170
    for i in range(28):
        a(f"v_lshlrev_b32 v{X+2*i}, 16, v{100+i}"); a(f"v_and_b32 v{X+2*i+1}, 0xffff0000, v{100+i}")
    def reduce8(r):
        a(f"v_add_f32_dpp v{r}, v{r}, v{r} quad_perm:[1,0,3,2] row_mask:0xf bank_mask:0xf"); a("s_nop 1")
        a(f"v_add_f32_dpp v{r}, v{r}, v{r} quad_perm:[2,3,0,1] row_mask:0xf bank_mask:0xf"); a("s_nop 1")
        a(f"v_add_f32_dpp v{r}, v{r}, v{r} row_half_mirror row_mask:0xf bank_mask:0xf"); a("s_nop 1")
    def stats():
        a(f"v_add_f32 v10, v{X}, v{X+1}")
        for i in range(2, 56): a(f"v_add_f32 v10, v10, v{X+i}")
        a("s_nop 1"); reduce8(10)
        a("v_mul_f32 v10, " + fbits(1.0/448) + ", v10")
        a("v_mov_b32 v11, 0")
        for i in range(56):
            a(f"v_sub_f32 v12, v{X+i}, v10"); a("v_fmac_f32 v11, v12, v12")
        a("s_nop 1"); reduce8(11)
        a("v_mov_b32 v12, " + fbits(1e-5)); a("v_fmac_f32 v12, " + fbits(1.0/448) + ", v11")
        a("v_rsq_f32 v12, v12"); a("s_nop 1")
        a("v_mul_f32 v11, v10, v12"); a("v_sub_f32 v11, 0, v11"); a("v_mov_b32 v10, v12")
    stats()
    a(f"v_mul_u32_u24 v3, {AS}, v1"); a("v_mul_u32_u24 v4, 112, v2"); a("v_add_u32 v3, v3, v4")
    a(f"v_mul_u32_u24 v4, 224, v2"); a(f"v_add_u32 v4, {K2_MODL}, v4")
    for g in range(7):
        a(f"ds_read_b128 v[20:23], v3 offset:{16*g}")
        for m, base in ((0, 24), (1, 32), (2, 40)):
            a(f"ds_read_b128 v[{base}:{base+3}], v4 offset:{m*1792 + 32*g}")
            a(f"ds_read_b128 v[{base+4}:{base+7}], v4 offset:{m*1792 + 32*g + 16}")
        a("s_waitcnt lgkmcnt(0)")
        for e in range(8):
            xr = X + 8*g + e
            a(f"v_fma_f32 v12, v{xr}, v10, v11")
            a(f"v_fma_f32 v12, v12, v{32+e}, v{24+e}")
            if e % 2 == 0: a(f"v_lshlrev_b32 v13, 16, v{20+e//2}")
            else: a(f"v_and_b32 v13, 0xffff0000, v{20+e//2}")
            a("v_mul_f32 v12, v12, v13")
            a(f"v_fma_f32 v{xr}, v12, v{40+e}, v{xr}")
        for e in range(0, 8, 2):
            xr = X + 8*g + e
            a(f"v_cvt_pk_bf16_f32 v{100+4*g+e//2}, v{xr}, v{xr+1}")
            a(f"v_lshlrev_b32 v{xr}, 16, v{100+4*g+e//2}"); a(f"v_and_b32 v{xr+1}, 0xffff0000, v{100+4*g+e//2}")
    a("s_cmp_lg_u32 s40, 0"); a("s_cbranch_scc1 K2_NOX1")
    a("v_add_u32 v5, s42, v1"); a("v_mul_u32_u24 v5, 896, v5"); a("v_mul_u32_u24 v6, 112, v2"); a("v_add_u32 v5, v5, v6")
    a(f"s_mov_b32 s43, {WS_X1}")
    for i in range(7):
        a(f"buffer_store_dwordx4 v[{100+4*i}:{103+4*i}], v5, s[28:31], s43 offen offset:{16*i}")
    a.label("K2_NOX1")
    stats()
    for g in range(7):
        for m, base in ((3, 24), (4, 32)):
            a(f"ds_read_b128 v[{base}:{base+3}], v4 offset:{m*1792 + 32*g}")
            a(f"ds_read_b128 v[{base+4}:{base+7}], v4 offset:{m*1792 + 32*g + 16}")
        a("s_waitcnt lgkmcnt(0)")
        for e in range(8):
            xr = X + 8*g + e
            a(f"v_fma_f32 v12, v{xr}, v10, v11")
            a(f"v_fma_f32 v{xr}, v12, v{32+e}, v{24+e}")
        for e in range(0, 8, 2):
            xr = X + 8*g + e
            a(f"v_cvt_pk_bf16_f32 v{20+e//2}, v{xr}, v{xr+1}")
        a(f"ds_write_b128 v3, v[20:23] offset:{16*g}")
    a("s_waitcnt vmcnt(0) lgkmcnt(0)"); a("s_barrier")
    a("v_lshrrev_b32 v1, 6, v0"); a("s_nop 0"); a("v_readfirstlane_b32 s54, v1")
    a("v_and_b32 v1, 63, v0"); a("v_and_b32 v2, 15, v1"); a("v_lshrrev_b32 v3, 4, v1")
    a("s_mul_i32 s55, s40, 448"); a("s_mul_i32 s56, s54, 112"); a("s_add_u32 s55, s55, s56")
    a(f"v_add_u32 v4, s55, v2"); a("v_mul_u32_u24 v4, 896, v4"); a("v_lshlrev_b32 v5, 4, v3"); a("v_add_u32 v4, v4, v5")
    for j in range(7):
        a(f"v_add_u32 v{10+j}, {14336*j}, v4")
    a(f"v_mul_u32_u24 v6, {AS}, v2"); a("v_add_u32 v6, v6, v5")
    for r in range(56): a(f"v_mov_b32 v{100+r}, 0")
    a(f"s_mov_b32 s43, {WS_WINT}")
    NS = 3
    def ldB(ks):
        st = ks % NS
        for j in range(7):
            a(f"buffer_load_dwordx4 v[{160+28*st+4*j}:{163+28*st+4*j}], v{10+j}, s[28:31], s43 offen offset:{64*ks}")
    def body(trans):
        for ks in range(NS - 1): ldB(ks)
        for ks in range(14):
            if ks + NS - 1 < 14: ldB(ks + NS - 1)
            a(f"ds_read_b128 v[20:23], v6 offset:{64*ks}"); a(f"ds_read_b128 v[24:27], v6 offset:{64*ks + 16*AS}")
            outstanding = min(NS - 1, 13 - ks)
            a(f"s_waitcnt vmcnt({7*outstanding}) lgkmcnt(0)")
            st = ks % NS
            for j in range(7):
                for i in range(2):
                    acc = 100 + 8*j + 4*i; B = 160 + 28*st + 4*j; A = 20 + 4*i
                    if trans: a(f"v_mfma_f32_16x16x32_bf16 v[{acc}:{acc+3}], v[{B}:{B+3}], v[{A}:{A+3}], v[{acc}:{acc+3}]")
                    else:     a(f"v_mfma_f32_16x16x32_bf16 v[{acc}:{acc+3}], v[{A}:{A+3}], v[{B}:{B+3}], v[{acc}:{acc+3}]")
    def gelu(r):
        a(f"v_mul_f32 v30, v{r}, v{r}")
        a("v_fma_f32 v30, v30, s60, v31")
        a(f"v_mul_f32 v30, v30, v{r}"); a("v_exp_f32 v30, v30"); a("s_nop 0")
        a("v_add_f32 v30, 1.0, v30"); a("v_rcp_f32 v30, v30"); a("s_nop 0")
        a(f"v_fma_f32 v{r}, -v{r}, v30, v{r}")
    import math
    a("s_mov_b32 s60, " + fbits(0.7978845608028654 * 0.044715 * 2 * math.log2(math.e)))
    a("s_mov_b32 s61, " + fbits(0.7978845608028654 * 2 * math.log2(math.e)))
    a("v_mov_b32 v31, s61")
    a("s_cmp_ge_u32 s40, 2"); a("s_cbranch_scc1 K2_Z2")
    body(True)
    a("s_nop 15"); a("s_nop 7")
    a("v_add_u32 v7, s42, v2"); a("v_mul_u32_u24 v7, 1792, v7"); a("v_lshlrev_b32 v8, 3, v3"); a("v_add_u32 v7, v7, v8")
    a(f"s_lshl_b32 s43, s55, 1"); a(f"s_add_u32 s43, s43, {WS_Z1}")
    for j in range(7):
        for i in range(2):
            acc = 100 + 8*j + 4*i
            for r in range(4): gelu(acc + r)
            a(f"v_cvt_pk_bf16_f32 v32, v{acc}, v{acc+1}"); a(f"v_cvt_pk_bf16_f32 v33, v{acc+2}, v{acc+3}")
            a(f"buffer_store_dwordx2 v[32:33], v7, s[28:31], s43 offen offset:{32*j + 16*1792*i}" if 32*j + 16*1792*i < 4096 else
              f"v_add_u32 v8, {16*1792*i}, v7")
            if 32*j + 16*1792*i >= 4096:
                a(f"buffer_store_dwordx2 v[32:33], v8, s[28:31], s43 offen offset:{32*j}")
    a("s_branch K2_END")
    a.label("K2_Z2")
    body(False)
    a("s_nop 15"); a("s_nop 7")
    a("s_sub_u32 s56, s55, 896")
    a("v_add_u32 v7, s56, v2"); a("v_lshlrev_b32 v7, 12, v7"); a("v_lshlrev_b32 v8, 3, v3"); a("v_add_u32 v7, v7, v8")
    a(f"s_lshl_b32 s43, s42, 1"); a(f"s_add_u32 s43, s43, {WS_Z2T}")
    for r in range(16): a(f"v_mov_b32 v{40+r}, 0")
    for j in range(7):
        for i in range(2):
            acc = 100 + 8*j + 4*i
            for r in range(4): gelu(acc + r)
            a(f"v_cvt_pk_bf16_f32 v32, v{acc}, v{acc+1}"); a(f"v_cvt_pk_bf16_f32 v33, v{acc+2}, v{acc+3}")
            a(f"v_add_u32 v8, {65536*j}, v7")
            a(f"buffer_store_dwordx2 v[32:33], v8, s[28:31], s43 offen offset:{32*i}")
            a(f"v_lshlrev_b32 v34, 16, v32"); a(f"v_and_b32 v35, 0xffff0000, v32"); a(f"v_lshlrev_b32 v36, 16, v33"); a(f"v_and_b32 v37, 0xffff0000, v33")
            for r in range(4):
                a(f"v_add_f32 v{40+4*i+r}, v{40+4*i+r}, v{34+r}"); a(f"v_fmac_f32 v{48+4*i+r}, v{34+r}, v{34+r}")
    a("s_nop 1")
    for r in range(16):
        for rot in (8, 4, 2, 1):
            a(f"v_add_f32_dpp v{40+r}, v{40+r}, v{40+r} row_ror:{rot} row_mask:0xf bank_mask:0xf"); a("s_nop 1")
    a("v_cmp_eq_u32 vcc, 0, v2"); a("s_and_saveexec_b64 s[44:45], vcc")
    a("s_lshl_b32 s56, s54, 8"); a(f"s_add_u32 s56, s56, {K2_STAT}")
    a("v_lshlrev_b32 v8, 5, v3"); a("v_add_u32 v8, s56, v8")
    for i in range(2):
        for r in range(4):
            a(f"v_mov_b32 v34, v{40+4*i+r}"); a(f"v_mov_b32 v35, v{48+4*i+r}")
            a(f"ds_write_b64 v8, v[34:35] offset:{128*i + 8*r}")
    a("s_mov_b64 exec, s[44:45]")
    a("s_waitcnt lgkmcnt(0)"); a("s_barrier")
    a("v_cmp_gt_u32 vcc, 32, v0"); a("s_and_saveexec_b64 s[44:45], vcc"); a("s_cbranch_execz K2_END")
    a(f"v_lshlrev_b32 v8, 3, v0"); a(f"v_add_u32 v8, {K2_STAT}, v8")
    for w in range(4): a(f"ds_read_b64 v[{34+2*w}:{35+2*w}], v8 offset:{256*w}")
    a("s_waitcnt lgkmcnt(0)")
    a("v_add_f32 v34, v34, v36"); a("v_add_f32 v34, v34, v38"); a("v_add_f32 v34, v34, v40")
    a("v_add_f32 v35, v35, v37"); a("v_add_f32 v35, v35, v39"); a("v_add_f32 v35, v35, v41")
    a("s_sub_u32 s56, s40, 2"); a("s_lshl_b32 s56, s56, 14"); a("s_lshl_b32 s57, s42, 3"); a("s_add_u32 s56, s56, s57"); a(f"s_add_u32 s56, s56, {WS_STAT}")
    a("v_lshlrev_b32 v8, 3, v0")
    a("buffer_store_dwordx2 v[34:35], v8, s[28:31], s56 offen")
    a.label("K2_END")
    a("s_endpgm")
    return name, 256
```

```python
from common import *
RS = 144

def lds_size(k3):
    TB = 128 if k3 else 64
    return 2 * (64 + TB) * RS + (16384 if k3 else 0)

def gen_gemm(a, k3, PD=4):
    name = "k3_gemm2_kernel" if k3 else "k4_gemm3_kernel"
    L = "K3" if k3 else "K4"
    TB = 128 if k3 else 64
    NCH = 32 if k3 else 14
    strideA = 4096 if k3 else 1792
    strideB = 4096 if k3 else 1792
    nA, nB = 2, TB // 32
    BUFSZ = (64 + TB) * RS
    STAT = 0
    B0 = 16384 if k3 else 0
    JB = TB // 32
    kernel_begin(a, name)
    a("s_cmp_ge_u32 s2, 224"); a(f"s_cbranch_scc1 {L}_END")
    a("s_load_dwordx2 s[14:15], s[0:1], %d" % KA['ws'])
    if k3:
        a("s_load_dwordx4 s[4:7], s[0:1], %d" % KA['w_sp'])
        a("s_and_b32 s40, s2, 3"); a("s_lshl_b32 s40, s40, 2")
        a("s_lshr_b32 s41, s2, 3"); a("s_and_b32 s42, s41, 3"); a("s_add_u32 s40, s40, s42")
        a("s_lshr_b32 s41, s41, 2"); a("s_bfe_u32 s42, s2, 0x10002"); a("s_mul_i32 s42, s42, 7"); a("s_add_u32 s41, s41, s42")
        a("s_lshl_b32 s42, s40, 7")
        a("s_lshl_b32 s43, s41, 6")
    else:
        a("s_load_dwordx2 s[6:7], s[0:1], %d" % KA['out'])
        a("s_lshr_b32 s40, s2, 3"); a("s_mul_i32 s41, s40, 37"); a("s_lshr_b32 s41, s41, 8")
        a("s_mul_i32 s42, s41, 7"); a("s_sub_u32 s43, s40, s42")
        a("s_and_b32 s40, s2, 7"); a("s_lshl_b32 s40, s40, 2"); a("s_add_u32 s40, s40, s41")
        a("s_lshl_b32 s42, s40, 6")
        a("s_lshl_b32 s43, s43, 6")
    a("s_waitcnt lgkmcnt(0)")
    srd(a, 28, 14, WS_SIZE)
    if k3:
        srd(a, 16, 4, 2048 * 4096)
    a("v_lshrrev_b32 v1, 3, v0"); a("v_and_b32 v2, 7, v0"); a("v_lshlrev_b32 v2, 4, v2")
    a("v_add_u32 v3, s43, v1"); a(f"v_mul_u32_u24 v3, {strideA}, v3"); a("v_add_u32 v3, v3, v2")
    a(f"v_add_u32 v4, {32*strideA}, v3")
    a("v_add_u32 v5, s42, v1"); a(f"v_mul_u32_u24 v5, {strideB}, v5"); a("v_add_u32 v5, v5, v2")
    for i in range(1, nB):
        a(f"v_add_u32 v{5+i}, {32*i*strideB}, v5")
    a(f"s_mov_b32 s44, {WS_Z2T if k3 else WS_WOUTT}")
    a(f"s_mov_b32 s45, {0 if k3 else WS_P}")
    BS = "s[16:19]" if k3 else "s[28:31]"
    SET0 = 96
    SS = 4 * (nA + nB)
    def gload(ch):
        st = SET0 + SS * (ch % PD)
        a(f"buffer_load_dwordx4 v[{st}:{st+3}], v3, s[28:31], s44 offen")
        a(f"buffer_load_dwordx4 v[{st+4}:{st+7}], v4, s[28:31], s44 offen")
        for i in range(nB):
            a(f"buffer_load_dwordx4 v[{st+8+4*i}:{st+11+4*i}], v{5+i}, {BS}, s45 offen")
        a("s_add_u32 s44, s44, 128"); a("s_add_u32 s45, s45, 128")
    for ch in range(PD):
        gload(ch)
    a(f"v_mul_u32_u24 v9, {RS}, v1"); a("v_add_u32 v9, v9, v2"); a("v_add_u32 v64, 0x8000, v9")
    if k3:
        a("v_lshlrev_b32 v10, 6, v0")
        a(f"s_mov_b32 s46, {WS_STAT}"); a(f"s_mov_b32 s47, {WS_STAT + 16384}")
        for i in range(4):
            a(f"buffer_load_dwordx4 v[{16+4*i}:{19+4*i}], v10, s[28:31], s46 offen offset:{16*i}")
        for i in range(4):
            a(f"buffer_load_dwordx4 v[{32+4*i}:{35+4*i}], v10, s[28:31], s47 offen offset:{16*i}")
        a("s_waitcnt vmcnt(0)")
        for e in range(8):
            a(f"v_add_f32 v11, v{16+2*e}, v{32+2*e}"); a(f"v_add_f32 v12, v{17+2*e}, v{33+2*e}")
            a("v_mul_f32 v11, " + fbits(1.0/896) + ", v11")
            a("v_mul_f32 v12, " + fbits(1.0/896) + ", v12")
            a("v_fma_f32 v12, -v11, v11, v12"); a("v_add_f32 v12, " + fbits(1e-5) + ", v12")
            a("v_rsq_f32 v12, v12"); a("s_nop 0")
            a(f"v_mov_b32 v{48+e}, v12"); a(f"v_mul_f32 v{56+e}, v11, v12"); a(f"v_sub_f32 v{56+e}, 0, v{56+e}")
        a("v_lshlrev_b32 v10, 5, v0")
        a(f"ds_write_b128 v10, v[48:51] offset:{STAT}"); a(f"ds_write_b128 v10, v[52:55] offset:{STAT+16}")
        a(f"ds_write_b128 v10, v[56:59] offset:{STAT+8192}"); a(f"ds_write_b128 v10, v[60:63] offset:{STAT+8192+16}")
        a("v_lshlrev_b32 v10, 5, v0"); a("v_and_b32 v10, 0xe0, v10")
        a("s_waitcnt lgkmcnt(0)"); a("s_barrier")
    def stage(ch):
        st = SET0 + SS * (ch % PD)
        bo = B0 + (ch & 1) * BUFSZ
        if k3:
            so = STAT + ch * 256
            a(f"ds_read_b128 v[16:19], v10 offset:{so}"); a(f"ds_read_b128 v[20:23], v10 offset:{so+16}")
            a(f"ds_read_b128 v[24:27], v10 offset:{so+8192}"); a(f"ds_read_b128 v[28:31], v10 offset:{so+8192+16}")
            a("s_waitcnt lgkmcnt(0)")
            for i in range(2):
                for d in range(4):
                    src = st + 4*i + d
                    a(f"v_lshlrev_b32 v11, 16, v{src}"); a(f"v_and_b32 v12, 0xffff0000, v{src}")
                    a(f"v_fma_f32 v11, v11, v{16+2*d}, v{24+2*d}"); a(f"v_fma_f32 v12, v12, v{17+2*d}, v{25+2*d}")
                    a(f"v_cvt_pk_bf16_f32 v{src}, v11, v12")
        a(f"ds_write_b128 v9, v[{st}:{st+3}] offset:{bo}")
        a(f"ds_write_b128 v9, v[{st+4}:{st+7}] offset:{bo + 32*RS}")
        for i in range(nB):
            o = bo + 64*RS + 32*i*RS
            a(f"ds_write_b128 v{9 if o < 65536 else 64}, v[{st+8+4*i}:{st+11+4*i}] offset:{o if o < 65536 else o - 0x8000}")
    a(f"s_waitcnt vmcnt({(nA+nB)*(PD-1)})")
    stage(0)
    a("v_lshrrev_b32 v11, 6, v0"); a("s_nop 0"); a("v_readfirstlane_b32 s54, v11")
    a("s_and_b32 s55, s54, 1"); a("s_lshr_b32 s56, s54, 1")
    a("v_and_b32 v1, 63, v0"); a("v_and_b32 v2, 15, v1"); a("v_lshrrev_b32 v13, 4, v1")
    a(f"v_mul_u32_u24 v14, {RS}, v2"); a("v_lshlrev_b32 v15, 4, v13"); a("v_add_u32 v14, v14, v15")
    a(f"s_mul_i32 s57, s56, {32*RS}"); a("v_add_u32 v15, s57, v14")
    a(f"s_mul_i32 s57, s55, {(TB//2)*RS}"); a(f"s_add_u32 s57, s57, {64*RS}"); a("v_add_u32 v14, s57, v14")
    ACC = 32
    FR = 200
    for r in range(8 * JB): a(f"v_mov_b32 v{ACC+r}, 0")
    a("s_waitcnt lgkmcnt(0)"); a("s_barrier")
    for ch in range(NCH):
        bo = B0 + (ch & 1) * BUFSZ
        for ks in range(2):
            f = FR + 24 * ks
            for i in range(2):
                a(f"ds_read_b128 v[{f+4*i}:{f+4*i+3}], v15 offset:{bo + 16*i*RS + 64*ks}")
            for j in range(JB):
                a(f"ds_read_b128 v[{f+8+4*j}:{f+11+4*j}], v14 offset:{bo + 16*j*RS + 64*ks}")
        if ch + PD < NCH:
            gload(ch + PD)
        for ks in range(2):
            f = FR + 24 * ks
            a(f"s_waitcnt lgkmcnt({(2+JB)*(1-ks)})")
            for j in range(JB):
                for i in range(2):
                    acc = ACC + 8*j + 4*i
                    a(f"v_mfma_f32_16x16x32_bf16 v[{acc}:{acc+3}], v[{f+4*i}:{f+4*i+3}], v[{f+8+4*j}:{f+11+4*j}], v[{acc}:{acc+3}]")
        if ch + 1 < NCH:
            outstanding = min(PD - 1, NCH - 2 - ch)
            a(f"s_waitcnt vmcnt({(nA+nB)*outstanding})")
            stage(ch + 1)
            a("s_waitcnt lgkmcnt(0)"); a("s_barrier")
    a("s_nop 15"); a("s_nop 7")
    a(f"s_mul_i32 s57, s55, {TB//2}"); a("s_add_u32 s57, s57, s42"); a("v_add_u32 v3, s57, v2")
    a("s_lshl_b32 s57, s56, 5"); a("s_add_u32 s57, s57, s43"); a("v_lshlrev_b32 v4, 2, v13"); a("v_add_u32 v4, s57, v4")
    if k3:
        srd(a, 20, 6, 4096)
        a("v_lshlrev_b32 v5, 1, v3")
        for j in range(JB):
            a(f"buffer_load_ushort v{10+j}, v5, s[20:23], 0 offen offset:{32*j}")
        a("v_mul_u32_u24 v6, 1792, v3"); a("v_lshlrev_b32 v7, 1, v4"); a("v_add_u32 v6, v6, v7")
        a(f"s_mov_b32 s58, {WS_Z1}"); a(f"s_mov_b32 s59, {WS_P}")
        for j in range(JB):
            a(f"v_add_u32 v7, {16*1792*j}, v6")
            for i in range(2):
                a(f"buffer_load_dwordx2 v[{96+8*j+2*i}:{97+8*j+2*i}], v7, s[28:31], s58 offen offset:{32*i}")
        a("s_waitcnt vmcnt(0)")
        for j in range(JB):
            a(f"v_lshlrev_b32 v{10+j}, 16, v{10+j}")
            a(f"v_add_u32 v7, {16*1792*j}, v6")
            for i in range(2):
                acc = ACC + 8*j + 4*i; z = 96 + 8*j + 2*i
                for p in range(2):
                    a(f"v_cvt_pk_bf16_f32 v16, v{acc+2*p}, v{acc+2*p+1}")
                    a("v_lshlrev_b32 v17, 16, v16"); a("v_and_b32 v18, 0xffff0000, v16")
                    a(f"v_add_f32 v17, v17, v{10+j}"); a(f"v_add_f32 v18, v18, v{10+j}")
                    a("v_cvt_pk_bf16_f32 v16, v17, v18")
                    a("v_lshlrev_b32 v17, 16, v16"); a("v_and_b32 v18, 0xffff0000, v16")
                    a(f"v_lshlrev_b32 v19, 16, v{z+p}"); a(f"v_and_b32 v20, 0xffff0000, v{z+p}")
                    a("v_mul_f32 v17, v17, v19"); a("v_mul_f32 v18, v18, v20")
                    a(f"v_cvt_pk_bf16_f32 v{z+p}, v17, v18")
                a(f"buffer_store_dwordx2 v[{z}:{z+1}], v7, s[28:31], s59 offen offset:{32*i}")
    else:
        srd(a, 20, 6, 2048 * 896)
        a("v_lshlrev_b32 v5, 2, v4"); a(f"s_movk_i32 s59, {WS_MOD + 5*1792}")
        for i in range(2):
            a(f"buffer_load_dwordx4 v[{48+4*i}:{51+4*i}], v5, s[28:31], s59 offen offset:{64*i}")
        a("v_mul_u32_u24 v6, 896, v3"); a("v_lshlrev_b32 v7, 1, v4"); a("v_add_u32 v6, v6, v7")
        a(f"s_mov_b32 s58, {WS_X1}")
        for j in range(JB):
            a(f"v_add_u32 v7, {16*896*j}, v6")
            for i in range(2):
                a(f"buffer_load_dwordx2 v[{96+8*j+2*i}:{97+8*j+2*i}], v7, s[28:31], s58 offen offset:{32*i}")
        a("s_waitcnt vmcnt(0)")
        for j in range(JB):
            a(f"v_add_u32 v7, {16*896*j}, v6")
            for i in range(2):
                acc = ACC + 8*j + 4*i; z = 96 + 8*j + 2*i
                for p in range(2):
                    a(f"v_cvt_pk_bf16_f32 v16, v{acc+2*p}, v{acc+2*p+1}")
                    a("v_lshlrev_b32 v17, 16, v16"); a("v_and_b32 v18, 0xffff0000, v16")
                    a(f"v_mul_f32 v17, v17, v{48+4*i+2*p}"); a(f"v_mul_f32 v18, v18, v{49+4*i+2*p}")
                    a("v_cvt_pk_bf16_f32 v16, v17, v18")
                    a("v_lshlrev_b32 v17, 16, v16"); a("v_and_b32 v18, 0xffff0000, v16")
                    a(f"v_lshlrev_b32 v19, 16, v{z+p}"); a(f"v_and_b32 v20, 0xffff0000, v{z+p}")
                    a("v_add_f32 v17, v17, v19"); a("v_add_f32 v18, v18, v20")
                    a(f"v_cvt_pk_bf16_f32 v{z+p}, v17, v18")
                a(f"buffer_store_dwordx2 v[{z}:{z+1}], v7, s[20:23], 0 offen offset:{32*i}")
    a.label(f"{L}_END")
    a("s_endpgm")
    return name, 256
```

```python
import sys, os
sys.path.insert(0, os.path.dirname(__file__))
from common import *
import k1, k2, k34
ref = open('adaLN_cond__ssm_conv_h3__mixer_gmlp__prompt.s.ref').read().split('\n')
hdr = [l for l in ref if l.startswith(';') and '@launch' not in l]
a = Asm()
ks = []
ks.append(k1.gen_k1(a)); ks.append(k2.gen_k2(a)); ks.append(k34.gen_gemm(a, True)); ks.append(k34.gen_gemm(a, False))
launch = [
 f"; @launch kernel=k1_conv_kernel grid=({k1.K1_GRID},1,1) block=(256,1,1) lds={k1.K1_LDS}",
 f"; @launch kernel=k2_gemm1_kernel grid=(256,1,1) block=(256,1,1) lds={k2.K2_LDS}",
 f"; @launch kernel=k3_gemm2_kernel grid=(224,1,1) block=(256,1,1) lds={k34.lds_size(True)}",
 f"; @launch kernel=k4_gemm3_kernel grid=(224,1,1) block=(256,1,1) lds={k34.lds_size(False)}",
]
out = "\n".join(hdr + launch) + '\n.amdgcn_target "amdgcn-amd-amdhsa--gfx950"\n.text\n' + a.text() + '\n.section .rodata,"a"\n' + "".join(kernel_desc(n, v) for n, v in ks)
open('adaLN_cond__ssm_conv_h3__mixer_gmlp__prompt.s', 'w').write(out)
```

```python
class Asm:
    def __init__(self):
        self.l = []
    def __call__(self, s):
        self.l.append("    " + s)
    def label(self, s):
        self.l.append(s + ":")
    def raw(self, s):
        self.l.append(s)
    def text(self):
        return "\n".join(self.l)

KA = dict(q=0, k=8, v=16, shift_k=24, ssm_k=32, ssm_D=40, B_x=48, w_in=56, w_sp=64,
          b_sp=72, w_out=80, c=88, w_mod=96, out=104, debug=112, ws=120)
WS_MOD   = 0x0
WS_YT    = 0x4000
WS_WINT  = 0x1C4000
WS_WOUTT = 0x34C000
WS_X1    = 0x410000
WS_Z1    = 0x5D0000
WS_Z2T   = 0x950000
WS_STAT  = 0xCD0000
WS_P     = 0xCD8000
WS_SIZE  = 268435456

def srd(a, sd, sbase, nbytes):
    a(f"s_mov_b32 s{sd}, s{sbase}")
    a(f"s_and_b32 s{sd+1}, s{sbase+1}, 0xffff")
    a(f"s_mov_b32 s{sd+2}, {nbytes}")
    a(f"s_mov_b32 s{sd+3}, 0x00020000")

def kernel_begin(a, name):
    a.raw(f".globl {name}")
    a.raw(".p2align 8")
    a.raw(f".type {name},@function")
    a.label(name)

def kernel_desc(name, vgpr, sgpr=102, accum=None):
    if accum is None:
        accum = (vgpr + 3) // 4 * 4
    return f""".p2align 6
.amdhsa_kernel {name}
  .amdhsa_next_free_vgpr {vgpr}
  .amdhsa_next_free_sgpr {sgpr}
  .amdhsa_accum_offset {accum}
  .amdhsa_group_segment_fixed_size 0
  .amdhsa_kernarg_size 128
  .amdhsa_user_sgpr_count 2
  .amdhsa_user_sgpr_kernarg_segment_ptr 1
  .amdhsa_system_sgpr_workgroup_id_x 1
.end_amdhsa_kernel
"""
def fbits(x):
    import struct
    return "0x%08x" % struct.unpack("<I", struct.pack("<f", x))[0]

import os
TS = os.environ.get("TS", "")
def stamp(a, i):
    if TS: a(f"s_memtime s[{70+2*i}:{71+2*i}]")
def stamp_store(a, n, wgsel=0):
    if not TS: return
    LBL = len(a.l)
    a("s_waitcnt lgkmcnt(0)")
    a(f"s_cmp_lg_u32 s2, {wgsel}"); a("s_cbranch_scc1 TS_SKIP%d" % LBL)
    a("s_load_dwordx2 s[66:67], s[0:1], 112"); a("s_waitcnt lgkmcnt(0)")
    srd(a, 64, 66, 256)
    a("v_cmp_eq_u32 vcc, 0, v0"); a("s_and_saveexec_b64 s[68:69], vcc")
    for i in range(n):
        a(f"s_sub_u32 s{70+2*i}, s{70+2*i}, s70") if i else None
    for i in range(1, n):
        a(f"v_mov_b32 v1, s{70+2*i}"); a("v_mov_b32 v2, 0")
        a(f"buffer_store_dword v1, v2, s[64:67], 0 offen offset:{4*i}")
    a("s_mov_b64 exec, s[68:69]")
    a.label("TS_SKIP%d" % LBL)
```

```python
from common import *

NCONV, NMOD, NTIN, NTOUT = 224, 21, 196, 98
K1_GRID = NCONV + NMOD + NTIN + NTOUT
XC = 4416
XCH = 8 * XC
UB = 2 * XCH
UCH = 96 * 80
K1_LDS = UB + 2 * UCH

def gen_k1(a):
    name = "k1_conv_kernel"
    kernel_begin(a, name)
    a("s_cmp_ge_u32 s2, %d" % K1_GRID)
    a("s_cbranch_scc1 K1_END")
    a("s_cmp_ge_u32 s2, %d" % (NCONV + NMOD))
    a("s_cbranch_scc1 K1_TRANS")
    a("s_cmp_ge_u32 s2, %d" % NCONV)
    a("s_cbranch_scc1 K1_MOD")
    a("s_load_dwordx4 s[4:7], s[0:1], %d" % KA['k'])
    a("s_load_dwordx4 s[8:11], s[0:1], %d" % KA['shift_k'])
    a("s_load_dwordx2 s[12:13], s[0:1], %d" % KA['ssm_D'])
    a("s_load_dwordx2 s[14:15], s[0:1], %d" % KA['ws'])
    stamp(a, 0)
    a("s_lshl_b32 s40, s2, 4")
    a("s_lshl_b32 s41, s2, 2")
    a("s_waitcnt lgkmcnt(0)")
    a("s_load_dwordx4 s[32:35], s[8:9], s40")
    a("s_load_dword s36, s[12:13], s41")
    srd(a, 16, 4, 1835008)
    srd(a, 20, 6, 1835008)
    srd(a, 24, 10, 1835008)
    srd(a, 28, 14, WS_SIZE)
    a("v_mul_u32_u24 v1, 7168, v0")
    a("v_add_u32 v1, s41, v1")
    a("s_mov_b32 s42, 0x7ffffff0")
    for j in range(11):
        if j < 3:
            a(f"v_add_u32 v2, {(j-3)*896 & 0xffffffff}, v1")
            a("v_cmp_gt_i32 vcc, 0, v2")
            a("v_mov_b32 v3, s42")
            a("v_cndmask_b32 v2, v2, v3, vcc")
            a(f"buffer_load_dword v{10+j}, v2, s[16:19], 0 offen")
        else:
            a(f"v_add_u32 v2, {(j-3)*896}, v1")
            a(f"buffer_load_dword v{10+j}, v2, s[16:19], 0 offen")
    for j in range(8):
        a(f"v_add_u32 v2, {j*896}, v1")
        a(f"buffer_load_dword v{21+j}, v2, s[20:23], 0 offen")
    a("s_lshl_b32 s43, s2, 13")
    a("v_lshlrev_b32 v4, 4, v0")
    a("v_add_u32 v4, s43, v4")
    a("v_subrev_u32 v5, 16, v4")
    a("v_cmp_eq_u32 vcc, 0, v0")
    a("v_mov_b32 v3, s42")
    a("v_cndmask_b32 v5, v5, v3, vcc")
    a("buffer_load_dwordx4 v[30:33], v5, s[24:27], 0 offen")
    a("buffer_load_dwordx4 v[34:37], v4, s[24:27], 0 offen")
    a("v_add_u32 v6, 4096, v4")
    a("v_add_u32 v5, 4096, v5")
    a("v_cndmask_b32 v5, v5, v3, vcc")
    a("buffer_load_dwordx4 v[38:41], v5, s[24:27], 0 offen")
    a("buffer_load_dwordx4 v[42:45], v6, s[24:27], 0 offen")
    a("v_mov_b32 v46, 0"); a("v_mov_b32 v47, 0"); a("v_mov_b32 v48, 0"); a("v_mov_b32 v49, 0")
    a("v_lshlrev_b32 v6, 4, v0")
    a("v_cmp_gt_u32 vcc, 160, v0")
    a("s_and_saveexec_b64 s[44:45], vcc")
    a(f"v_add_u32 v7, {UB}, v6")
    a(f"ds_write_b128 v7, v[46:49]")
    a(f"ds_write_b128 v7, v[46:49] offset:{UCH}")
    a("s_mov_b64 exec, s[44:45]")
    a("v_cmp_gt_u32 vcc, 48, v0")
    a("s_and_saveexec_b64 s[44:45], vcc")
    a("v_mul_u32_u24 v6, 0x5556, v0"); a("v_lshrrev_b32 v6, 16, v6")
    a("v_mul_u32_u24 v7, 3, v6"); a("v_sub_u32 v7, v0, v7")
    a(f"v_mul_u32_u24 v6, {XC}, v6")
    a("v_lshlrev_b32 v7, 4, v7"); a("v_add_u32 v6, v6, v7")
    a("ds_write_b128 v6, v[46:49] offset:4096")
    a("s_mov_b64 exec, s[44:45]")
    a("s_waitcnt lgkmcnt(0)")
    for ch in range(2):
        a(f"s_lshl_b32 s{44+4*ch}, s{32+2*ch}, 16")
        a(f"s_and_b32 s{45+4*ch}, s{32+2*ch}, 0xffff0000")
        a(f"s_lshl_b32 s{46+4*ch}, s{33+2*ch}, 16")
        a(f"s_and_b32 s{47+4*ch}, s{33+2*ch}, 0xffff0000")
    a("s_lshl_b32 s52, s36, 16")
    a("s_and_b32 s53, s36, 0xffff0000")
    a("s_waitcnt vmcnt(4)")
    stamp(a, 1)
    for j in range(11):
        a(f"v_lshlrev_b32 v{50+j}, 16, v{10+j}")
        a(f"v_and_b32 v{61+j}, 0xffff0000, v{10+j}")
    def rnd2(d, x0, x1, o0, o1):
        a(f"v_cvt_pk_bf16_f32 v{d}, v{x0}, v{x1}")
        a(f"v_lshlrev_b32 v{o0}, 16, v{d}")
        a(f"v_and_b32 v{o1}, 0xffff0000, v{d}")
    for i in range(8):
        a(f"v_mul_f32 v90, s47, v{50+i}")
        a(f"v_mul_f32 v91, s51, v{61+i}")
        rnd2(92, 90, 91, 90, 91)
        for tap, sj in ((1, 2), (2, 1), (3, 0)):
            a(f"v_mul_f32 v93, s{44+sj}, v{50+i+tap}")
            a(f"v_mul_f32 v94, s{48+sj}, v{61+i+tap}")
            rnd2(92, 93, 94, 93, 94)
            a("v_add_f32 v90, v90, v93")
            a("v_add_f32 v91, v91, v94")
            rnd2(92, 90, 91, 90, 91)
        a(f"v_lshlrev_b32 v93, 16, v{21+i}")
        a(f"v_and_b32 v94, 0xffff0000, v{21+i}")
        a(f"v_mul_f32 v{72+i}, v90, v93")
        a(f"v_mul_f32 v{80+i}, v91, v94")
    for ch in range(2):
        for j in range(4):
            a(f"v_cvt_pk_bf16_f32 v{88+4*ch+j}, v{72+8*ch+2*j}, v{73+8*ch+2*j}")
    a("v_lshrrev_b32 v6, 2, v0"); a("v_mul_u32_u24 v6, 80, v6")
    a("v_and_b32 v7, 3, v0"); a("v_lshlrev_b32 v7, 4, v7"); a("v_add_u32 v6, v6, v7")
    a(f"v_add_u32 v6, {UB}, v6")
    a(f"ds_write_b128 v6, v[88:91] offset:{2560}")
    a(f"ds_write_b128 v6, v[92:95] offset:{UCH+2560}")
    a("s_waitcnt vmcnt(0)")
    a("v_sub_u32 v6, 255, v0"); a("v_lshlrev_b32 v6, 4, v6")
    for ch in range(2):
        W = 30 + 8 * ch
        for j in range(8):
            a(f"v_alignbit_b32 v{50+j}, v{W+7-j}, v{W+7-j}, 16")
        for j in range(7):
            a(f"v_mov_b32 v{60+j}, v{51+j}")
            a(f"v_alignbit_b32 v{70+j}, v{51+j}, v{50+j}, 16")
        for j in range(6):
            a(f"v_mov_b32 v{80+j}, v{71+j}")
        for c in range(8):
            j = c // 2
            if c % 2 == 0:
                reg = (50 + j) if j % 2 == 0 else (60 + j - 1)
            else:
                reg = (70 + j) if j % 2 == 0 else (80 + j - 1)
            o = ch*XCH + c*XC
            if o >= 65536: a("v_add_u32 v7, 0x8000, v6")
            a(f"ds_write_b128 v{6 if o < 65536 else 7}, v[{reg}:{reg+3}] offset:{o if o < 65536 else o - 0x8000}")
    a("s_waitcnt lgkmcnt(0)")
    a("s_barrier")
    stamp(a, 2)
    a("v_lshrrev_b32 v1, 6, v0")
    a("s_nop 0")
    a("v_readfirstlane_b32 s54, v1")
    a("s_lshr_b32 s55, s54, 1")
    a("s_and_b32 s56, s54, 1")
    a("v_and_b32 v1, 63, v0")
    a("v_and_b32 v2, 31, v1")
    a("v_lshrrev_b32 v3, 5, v1")
    a("v_sub_u32 v4, 7, v2"); a("v_and_b32 v4, 7, v4")
    a(f"v_mul_u32_u24 v4, {XC}, v4")
    a("v_lshrrev_b32 v5, 3, v2"); a("v_sub_u32 v5, v3, v5"); a("v_add_u32 v5, 255, v5"); a("v_lshlrev_b32 v5, 4, v5")
    a("v_add_u32 v4, v4, v5")
    a(f"s_mul_i32 s57, s55, {XCH}")
    a("v_add_u32 v4, s57, v4")
    a("s_lshl_b32 s58, s56, 5"); a("s_add_u32 s58, s58, 32")
    a("v_add_u32 v5, s58, v2"); a("v_mul_u32_u24 v5, 80, v5")
    a("v_lshlrev_b32 v6, 4, v3"); a("v_add_u32 v5, v5, v6")
    a(f"s_mul_i32 s57, s55, {UCH}"); a(f"s_add_u32 s57, s57, {UB}")
    a("v_add_u32 v5, s57, v5")
    for r in range(16):
        a(f"v_mov_b32 v{100+r}, 0")
    a("s_lshl_b32 s59, s56, 5"); a("s_add_u32 s59, s59, 32")
    def rd(s):
        b = 10 + 16 * s
        a(f"ds_read_b128 v[{b}:{b+3}], v4")
        a(f"ds_read_b128 v[{b+4}:{b+7}], v4 offset:32")
        a(f"ds_read_b128 v[{b+8}:{b+11}], v5")
        a(f"ds_read_b128 v[{b+12}:{b+15}], v5 offset:32")
        a("v_subrev_u32 v4, 64, v4")
        a("v_subrev_u32 v5, 80, v5")
    def mm(s):
        b = 10 + 16 * s
        a(f"v_mfma_f32_32x32x16_bf16 v[100:115], v[{b}:{b+3}], v[{b+8}:{b+11}], v[100:115]")
        a(f"v_mfma_f32_32x32x16_bf16 v[100:115], v[{b+4}:{b+7}], v[{b+12}:{b+15}], v[100:115]")
    rd(0)
    a.label("K1_LOOP")
    rd(1)
    a("s_waitcnt lgkmcnt(4)")
    mm(0)
    rd(0)
    a("s_waitcnt lgkmcnt(4)")
    mm(1)
    a("s_sub_u32 s59, s59, 2")
    a("s_cmp_gt_u32 s59, 0")
    a("s_cbranch_scc1 K1_LOOP")
    a("s_waitcnt lgkmcnt(0)")
    a("s_nop 15"); a("s_nop 7")
    stamp(a, 3)
    a("v_add_u32 v5, s58, v2"); a("v_mul_u32_u24 v5, 80, v5")
    a("v_lshlrev_b32 v6, 3, v3"); a("v_add_u32 v5, v5, v6"); a("v_add_u32 v5, s57, v5")
    for g in range(4):
        a(f"ds_read_b64 v[{10+2*g}:{11+2*g}], v5 offset:{16*g}")
    a("s_lshl_b32 s60, s2, 1"); a("s_add_u32 s60, s60, s55"); a("s_lshl_b32 s60, s60, 12"); a(f"s_add_u32 s60, s60, {WS_YT}")
    a("s_sub_u32 s61, s58, 32")
    a("v_add_u32 v6, s61, v2"); a("v_lshlrev_b32 v6, 6, v6"); a("v_lshlrev_b32 v7, 3, v3"); a("v_add_u32 v6, v6, v7")
    a("s_cmp_eq_u32 s55, 0"); a("s_cselect_b32 s62, s52, s53")
    a("s_waitcnt lgkmcnt(0)")
    for g in range(4):
        for p in range(2):
            r0 = 100 + 4 * g + 2 * p
            kvd = 10 + 2 * g + p
            a(f"v_lshlrev_b32 v20, 16, v{kvd}"); a(f"v_and_b32 v21, 0xffff0000, v{kvd}")
            a("v_mul_f32 v20, s62, v20"); a("v_mul_f32 v21, s62, v21")
            rnd2(22, 20, 21, 20, 21)
            rnd2(22, r0, r0 + 1, 24, 25)
            a("v_add_f32 v20, v20, v24"); a("v_add_f32 v21, v21, v25")
            a(f"v_cvt_pk_bf16_f32 v{30+2*g+p}, v20, v21")
        a(f"buffer_store_dwordx2 v[{30+2*g}:{31+2*g}], v6, s[28:31], s60 offen offset:{16*g}")
    a("s_waitcnt vmcnt(0)"); stamp(a, 4); stamp_store(a, 5, 3)
    a("s_branch K1_END")

    a.label("K1_MOD")
    a("s_load_dwordx4 s[4:7], s[0:1], %d" % KA['c'])
    a("s_load_dwordx2 s[14:15], s[0:1], %d" % KA['ws'])
    a(f"s_sub_u32 s3, s2, {NCONV}")
    a("s_waitcnt lgkmcnt(0)")
    srd(a, 16, 4, 896)
    srd(a, 20, 6, 448 * 5376)
    srd(a, 28, 14, WS_SIZE)
    a("v_lshlrev_b32 v1, 2, v0")
    a("buffer_load_dword v2, v1, s[16:19], 0 offen")
    a("s_mov_b32 s40, " + fbits(-1.4426950408889634))
    a("s_waitcnt vmcnt(0)")
    a("v_lshlrev_b32 v3, 16, v2"); a("v_and_b32 v4, 0xffff0000, v2")
    for r in (3, 4):
        a(f"v_mul_f32 v5, s40, v{r}"); a("v_exp_f32 v5, v5"); a("s_nop 0"); a("v_add_f32 v5, 1.0, v5")
        a("v_rcp_f32 v5, v5"); a("s_nop 0"); a(f"v_mul_f32 v{r}, v{r}, v5")
    a("v_cvt_pk_bf16_f32 v5, v3, v4"); a("v_lshlrev_b32 v6, 16, v5"); a("v_and_b32 v7, 0xffff0000, v5")
    a("v_lshlrev_b32 v1, 3, v0")
    a("ds_write_b64 v1, v[6:7]")
    a("s_waitcnt lgkmcnt(0)"); a("s_barrier")
    a("v_lshrrev_b32 v1, 6, v0"); a("s_nop 0"); a("v_readfirstlane_b32 s54, v1")
    a("v_and_b32 v1, 63, v0")
    a("s_mul_i32 s55, s54, 112")
    a("s_lshl_b32 s56, s3, 8")
    a("v_lshlrev_b32 v2, 2, v1"); a("v_add_u32 v2, s56, v2")
    a("s_mul_i32 s57, s55, 5376"); a("v_add_u32 v2, s57, v2")
    a("s_lshl_b32 s58, s55, 2"); a("v_mov_b32 v3, s58")
    a("v_mov_b32 v4, 0"); a("v_mov_b32 v5, 0")
    a("s_mov_b32 s59, 14")
    a.label("K1_MODLOOP")
    a("ds_read_b128 v[8:11], v3"); a("ds_read_b128 v[12:15], v3 offset:16")
    for i in range(8):
        a(f"v_add_u32 v6, {i*5376}, v2")
        a(f"buffer_load_dword v{16+i}, v6, s[20:23], 0 offen")
    a("v_add_u32 v2, %d, v2" % (8 * 5376)); a("v_add_u32 v3, 32, v3")
    a("s_waitcnt vmcnt(0) lgkmcnt(0)")
    for i in range(8):
        a(f"v_lshlrev_b32 v6, 16, v{16+i}"); a(f"v_and_b32 v7, 0xffff0000, v{16+i}")
        a(f"v_fmac_f32 v4, v{8+i}, v6"); a(f"v_fmac_f32 v5, v{8+i}, v7")
    a("s_sub_u32 s59, s59, 1"); a("s_cmp_gt_u32 s59, 0"); a("s_cbranch_scc1 K1_MODLOOP")
    a("v_lshlrev_b32 v6, 3, v0")
    a("ds_write_b64 v6, v[4:5] offset:2048")
    a("s_waitcnt lgkmcnt(0)"); a("s_barrier")
    a("v_cmp_gt_u32 vcc, 64, v0")
    a("s_and_saveexec_b64 s[44:45], vcc")
    a("s_cbranch_execz K1_END")
    for w in range(4):
        a(f"ds_read_b64 v[{8+2*w}:{9+2*w}], v6 offset:{2048+512*w}")
    a("s_waitcnt lgkmcnt(0)")
    a("v_add_f32 v4, v8, v10"); a("v_add_f32 v4, v4, v12"); a("v_add_f32 v4, v4, v14")
    a("v_add_f32 v5, v9, v11"); a("v_add_f32 v5, v5, v13"); a("v_add_f32 v5, v5, v15")
    a("v_cvt_pk_bf16_f32 v6, v4, v5"); a("v_lshlrev_b32 v4, 16, v6"); a("v_and_b32 v5, 0xffff0000, v6")
    a("s_lshl_b32 s56, s3, 7"); a("v_lshlrev_b32 v7, 1, v0"); a("v_add_u32 v7, s56, v7")
    a("v_add_f32 v8, 1.0, v4"); a("v_add_f32 v9, 1.0, v5")
    a("v_cvt_pk_bf16_f32 v6, v8, v9"); a("v_lshlrev_b32 v8, 16, v6"); a("v_and_b32 v9, 0xffff0000, v6")
    a("v_subrev_u32 v10, 448, v7"); a("v_cmp_gt_u32 vcc, 448, v10")
    a("v_subrev_u32 v10, 1792, v7"); a("s_movk_i32 s48, 448"); a("v_cmp_gt_u32 s[46:47], s48, v10"); a("s_or_b64 vcc, vcc, s[46:47]")
    a("s_nop 1")
    a("v_cndmask_b32 v4, v4, v8, vcc"); a("v_cndmask_b32 v5, v5, v9, vcc")
    a("v_lshlrev_b32 v7, 2, v7")
    a(f"buffer_store_dwordx2 v[4:5], v7, s[28:31], 0 offen offset:{WS_MOD}")
    a("s_branch K1_END")

    a.label("K1_TRANS")
    a("s_load_dwordx2 s[4:5], s[0:1], %d" % KA['w_in'])
    a("s_load_dwordx2 s[6:7], s[0:1], %d" % KA['w_out'])
    a("s_load_dwordx2 s[14:15], s[0:1], %d" % KA['ws'])
    a(f"s_sub_u32 s3, s2, {NCONV+NMOD}")
    a("s_waitcnt lgkmcnt(0)")
    srd(a, 28, 14, WS_SIZE)
    a(f"s_cmp_ge_u32 s3, {NTIN}")
    a("s_cbranch_scc1 K1_TOUT")
    srd(a, 16, 4, 448 * 3584)
    a("s_mov_b32 s40, 4793491"); a("s_mov_b32 s41, 896"); a("s_mov_b32 s42, 3584"); a("s_mov_b32 s43, 896"); a(f"s_mov_b32 s44, {WS_WINT}")
    a("s_branch K1_TGO")
    a.label("K1_TOUT")
    a(f"s_sub_u32 s3, s3, {NTIN}")
    srd(a, 16, 6, 896 * 896)
    a("s_mov_b32 s40, 19173962"); a("s_mov_b32 s41, 224"); a("s_mov_b32 s42, 896"); a("s_mov_b32 s43, 1792"); a(f"s_mov_b32 s44, {WS_WOUTT}")
    a.label("K1_TGO")
    a("s_lshl_b32 s45, s3, 8"); a("v_add_u32 v1, s45, v0")
    a("v_mul_hi_u32 v2, v1, s40")
    a("v_mul_lo_u32 v3, v2, s41"); a("v_sub_u32 v3, v1, v3")
    a("v_mul_lo_u32 v4, v2, s42"); a("v_lshlrev_b32 v4, 3, v4"); a("v_lshlrev_b32 v5, 2, v3"); a("v_add_u32 v4, v4, v5")
    for i in range(8):
        if i: a("v_add_u32 v4, s42, v4")
        a(f"buffer_load_dword v{10+i}, v4, s[16:19], 0 offen")
    a("v_mul_lo_u32 v5, v3, s43"); a("v_lshlrev_b32 v5, 1, v5"); a("v_lshlrev_b32 v6, 4, v2"); a("v_add_u32 v5, v5, v6")
    a("s_mov_b32 s46, 0xffff0000")
    a("s_waitcnt vmcnt(0)")
    for j in range(4):
        a(f"v_and_b32 v7, 0xffff, v{10+2*j}"); a(f"v_lshl_or_b32 v{20+j}, v{11+2*j}, 16, v7")
        a(f"v_lshrrev_b32 v7, 16, v{10+2*j}"); a(f"v_and_or_b32 v{24+j}, v{11+2*j}, s46, v7")
    a("buffer_store_dwordx4 v[20:23], v5, s[28:31], s44 offen")
    a("v_add_u32 v5, s43, v5")
    a("buffer_store_dwordx4 v[24:27], v5, s[28:31], s44 offen")
    a.label("K1_END")
    a("s_endpgm")
    return name, 128
```

```python
from common import *
AS = 928
K2_MODL = 32 * AS
K2_STAT = K2_MODL + 10752
K2_WB = K2_STAT + 4 * 32 * 8
K2_LDS = K2_WB + 448 * 144

def gen_k2(a):
    name = "k2_gemm1_kernel"
    kernel_begin(a, name)
    a("s_cmp_ge_u32 s2, 256"); a("s_cbranch_scc1 K2_END")
    a("s_load_dwordx2 s[4:5], s[0:1], %d" % KA['q'])
    a("s_load_dwordx2 s[14:15], s[0:1], %d" % KA['ws'])
    stamp(a, 0)
    a("s_and_b32 s40, s2, 3")
    a("s_lshr_b32 s41, s2, 2")
    a("s_lshl_b32 s42, s41, 5")
    a("s_waitcnt lgkmcnt(0)")
    srd(a, 16, 4, 1835008)
    srd(a, 28, 14, WS_SIZE)
    a("v_lshrrev_b32 v1, 3, v0")
    a("v_and_b32 v2, 7, v0")
    a("v_add_u32 v3, s42, v1"); a("v_mul_u32_u24 v3, 896, v3"); a("v_mul_u32_u24 v4, 112, v2"); a("v_add_u32 v3, v3, v4")
    for i in range(7):
        a(f"buffer_load_dwordx4 v[{100+4*i}:{103+4*i}], v3, s[16:19], 0 offen offset:{16*i}")
    a("v_lshrrev_b32 v5, 2, v0"); a("v_lshlrev_b32 v5, 12, v5"); a("v_and_b32 v6, 3, v0"); a("v_lshlrev_b32 v6, 4, v6"); a("v_add_u32 v5, v5, v6")
    a(f"s_lshl_b32 s43, s42, 1"); a(f"s_add_u32 s43, s43, {WS_YT}")
    for i in range(7):
        a(f"v_add_u32 v6, {i*64*4096}, v5")
        a(f"buffer_load_dwordx4 v[{130+4*i}:{133+4*i}], v6, s[28:31], s43 offen")
    a("v_lshlrev_b32 v7, 4, v0")
    for i in range(3):
        a(f"buffer_load_dwordx4 v[{160+4*i}:{163+4*i}], v7, s[28:31], 0 offen offset:{WS_MOD + 4096*i}" if i == 0 else
          f"v_add_u32 v8, {4096*i}, v7")
        if i:
            a(f"buffer_load_dwordx4 v[{160+4*i}:{163+4*i}], v8, s[28:31], 0 offen")
    a("v_and_b32 v6, 3, v0"); a(f"v_mul_u32_u24 v6, {8*AS}, v6"); a("v_lshrrev_b32 v8, 2, v0"); a("v_lshlrev_b32 v8, 1, v8"); a("v_add_u32 v6, v6, v8")
    a("s_waitcnt vmcnt(3)")
    for it in range(7):
        for j in range(4):
            a(f"ds_write_b16 v6, v{130+4*it+j} offset:{128*it + (2*j)*AS}")
            a(f"ds_write_b16_d16_hi v6, v{130+4*it+j} offset:{128*it + (2*j+1)*AS}")
    a("s_waitcnt vmcnt(0)")
    a(f"v_add_u32 v7, {K2_MODL}, v7")
    a("ds_write_b128 v7, v[160:163]"); a("ds_write_b128 v7, v[164:167] offset:4096")
    a("v_cmp_gt_u32 vcc, 160, v0"); a("s_and_saveexec_b64 s[44:45], vcc")
    a("ds_write_b128 v7, v[168:171] offset:8192")
    a("s_mov_b64 exec, s[44:45]")
    a("s_waitcnt lgkmcnt(0)"); a("s_barrier")
    stamp(a, 1)
    X = 170
    for i in range(28):
        a(f"v_lshlrev_b32 v{X+2*i}, 16, v{100+i}"); a(f"v_and_b32 v{X+2*i+1}, 0xffff0000, v{100+i}")
    def reduce8(r):
        a(f"v_add_f32_dpp v{r}, v{r}, v{r} quad_perm:[1,0,3,2] row_mask:0xf bank_mask:0xf"); a("s_nop 1")
        a(f"v_add_f32_dpp v{r}, v{r}, v{r} quad_perm:[2,3,0,1] row_mask:0xf bank_mask:0xf"); a("s_nop 1")
        a(f"v_add_f32_dpp v{r}, v{r}, v{r} row_half_mirror row_mask:0xf bank_mask:0xf"); a("s_nop 1")
    def stats():
        a(f"v_add_f32 v10, v{X}, v{X+1}")
        for i in range(2, 56): a(f"v_add_f32 v10, v10, v{X+i}")
        a("s_nop 1"); reduce8(10)
        a("v_mul_f32 v10, " + fbits(1.0/448) + ", v10")
        a("v_mov_b32 v11, 0")
        for i in range(56):
            a(f"v_sub_f32 v12, v{X+i}, v10"); a("v_fmac_f32 v11, v12, v12")
        a("s_nop 1"); reduce8(11)
        a("v_mov_b32 v12, " + fbits(1e-5)); a("v_fmac_f32 v12, " + fbits(1.0/448) + ", v11")
        a("v_rsq_f32 v12, v12"); a("s_nop 1")
        a("v_mul_f32 v11, v10, v12"); a("v_sub_f32 v11, 0, v11"); a("v_mov_b32 v10, v12")
    stats()
    a(f"v_mul_u32_u24 v3, {AS}, v1"); a("v_mul_u32_u24 v4, 112, v2"); a("v_add_u32 v3, v3, v4")
    a(f"v_mul_u32_u24 v4, 224, v2"); a(f"v_add_u32 v4, {K2_MODL}, v4")
    for g in range(7):
        a(f"ds_read_b128 v[20:23], v3 offset:{16*g}")
        for m, base in ((0, 24), (1, 32), (2, 40)):
            a(f"ds_read_b128 v[{base}:{base+3}], v4 offset:{m*1792 + 32*g}")
            a(f"ds_read_b128 v[{base+4}:{base+7}], v4 offset:{m*1792 + 32*g + 16}")
        a("s_waitcnt lgkmcnt(0)")
        for e in range(8):
            xr = X + 8*g + e
            a(f"v_fma_f32 v12, v{xr}, v10, v11")
            a(f"v_fma_f32 v12, v12, v{32+e}, v{24+e}")
            if e % 2 == 0: a(f"v_lshlrev_b32 v13, 16, v{20+e//2}")
            else: a(f"v_and_b32 v13, 0xffff0000, v{20+e//2}")
            a("v_mul_f32 v12, v12, v13")
            a(f"v_fma_f32 v{xr}, v12, v{40+e}, v{xr}")
        for e in range(0, 8, 2):
            xr = X + 8*g + e
            a(f"v_cvt_pk_bf16_f32 v{100+4*g+e//2}, v{xr}, v{xr+1}")
            a(f"v_lshlrev_b32 v{xr}, 16, v{100+4*g+e//2}"); a(f"v_and_b32 v{xr+1}, 0xffff0000, v{100+4*g+e//2}")
    a("s_cmp_lg_u32 s40, 0"); a("s_cbranch_scc1 K2_NOX1")
    a("v_add_u32 v5, s42, v1"); a("v_mul_u32_u24 v5, 896, v5"); a("v_mul_u32_u24 v6, 112, v2"); a("v_add_u32 v5, v5, v6")
    a(f"s_mov_b32 s43, {WS_X1}")
    for i in range(7):
        a(f"buffer_store_dwordx4 v[{100+4*i}:{103+4*i}], v5, s[28:31], s43 offen offset:{16*i}")
    a.label("K2_NOX1")
    stats()
    for g in range(7):
        for m, base in ((3, 24), (4, 32)):
            a(f"ds_read_b128 v[{base}:{base+3}], v4 offset:{m*1792 + 32*g}")
            a(f"ds_read_b128 v[{base+4}:{base+7}], v4 offset:{m*1792 + 32*g + 16}")
        a("s_waitcnt lgkmcnt(0)")
        for e in range(8):
            xr = X + 8*g + e
            a(f"v_fma_f32 v12, v{xr}, v10, v11")
            a(f"v_fma_f32 v{xr}, v12, v{32+e}, v{24+e}")
        for e in range(0, 8, 2):
            xr = X + 8*g + e
            a(f"v_cvt_pk_bf16_f32 v{20+e//2}, v{xr}, v{xr+1}")
        a(f"ds_write_b128 v3, v[20:23] offset:{16*g}")
    a("s_waitcnt vmcnt(0) lgkmcnt(0)"); a("s_barrier")
    stamp(a, 2)
    a("v_lshrrev_b32 v1, 6, v0"); a("s_nop 0"); a("v_readfirstlane_b32 s54, v1")
    a("v_and_b32 v1, 63, v0"); a("v_and_b32 v2, 15, v1"); a("v_lshrrev_b32 v3, 4, v1")
    a("s_mul_i32 s55, s40, 448"); a("s_mul_i32 s56, s54, 112"); a("s_add_u32 s55, s55, s56")
    a("v_lshlrev_b32 v5, 4, v3")
    a(f"v_mul_u32_u24 v6, {AS}, v2"); a("v_add_u32 v6, v6, v5")
    a("s_mul_i32 s57, s54, 112*144"); a(f"s_add_u32 s57, s57, {K2_WB}")
    a("v_mul_u32_u24 v4, 144, v2"); a("v_add_u32 v4, v4, v5"); a("v_add_u32 v4, s57, v4")
    a("v_lshrrev_b32 v7, 3, v0"); a("v_and_b32 v8, 7, v0"); a("v_lshlrev_b32 v8, 4, v8")
    a("v_mul_u32_u24 v9, 144, v7"); a("v_add_u32 v9, v9, v8"); a(f"v_add_u32 v9, {K2_WB}, v9")
    a("s_mul_i32 s57, s40, 448"); a("v_add_u32 v7, s57, v7"); a("v_mul_u32_u24 v7, 896, v7"); a("v_add_u32 v7, v7, v8")
    for r in range(56): a(f"v_mov_b32 v{100+r}, 0")
    def body(trans):
        a(f"s_mov_b32 s43, {WS_WINT}")
        def ld():
            for i in range(14):
                a(f"v_add_u32 v8, {32*896*i}, v7")
                a(f"buffer_load_dwordx4 v[{160+4*i}:{163+4*i}], v8, s[28:31], s43 offen")
            a("s_add_u32 s43, s43, 128")
        ld()
        for kc in range(7):
            a("s_waitcnt vmcnt(0)")
            for i in range(14):
                a(f"ds_write_b128 v9, v[{160+4*i}:{163+4*i}] offset:{32*144*i}")
            a("s_waitcnt lgkmcnt(0)"); a("s_barrier")
            if kc < 6: ld()
            for ks in range(2):
                a(f"ds_read_b128 v[20:23], v6 offset:{128*kc+64*ks}"); a(f"ds_read_b128 v[24:27], v6 offset:{128*kc+64*ks + 16*AS}")
                for j in range(7):
                    a(f"ds_read_b128 v[{216+4*j}:{219+4*j}], v4 offset:{16*144*j + 64*ks}")
                for j in range(7):
                    a(f"s_waitcnt lgkmcnt({6-j})")
                    for i in range(2):
                        acc = 100 + 8*j + 4*i; B = 216 + 4*j; A = 20 + 4*i
                        if trans: a(f"v_mfma_f32_16x16x32_bf16 v[{acc}:{acc+3}], v[{B}:{B+3}], v[{A}:{A+3}], v[{acc}:{acc+3}]")
                        else:     a(f"v_mfma_f32_16x16x32_bf16 v[{acc}:{acc+3}], v[{A}:{A+3}], v[{B}:{B+3}], v[{acc}:{acc+3}]")
                a("s_nop 7")
            a("s_barrier")
    def gelu(r):
        a(f"v_mul_f32 v30, v{r}, v{r}")
        a("v_fma_f32 v30, v30, s60, v31")
        a(f"v_mul_f32 v30, v30, v{r}"); a("v_exp_f32 v30, v30"); a("s_nop 0")
        a("v_add_f32 v30, 1.0, v30"); a("v_rcp_f32 v30, v30"); a("s_nop 0")
        a(f"v_fma_f32 v{r}, -v{r}, v30, v{r}")
    import math
    a("s_mov_b32 s60, " + fbits(0.7978845608028654 * 0.044715 * 2 * math.log2(math.e)))
    a("s_mov_b32 s61, " + fbits(0.7978845608028654 * 2 * math.log2(math.e)))
    a("v_mov_b32 v31, s61")
    a("s_cmp_ge_u32 s40, 2"); a("s_cbranch_scc1 K2_Z2")
    body(True)
    stamp(a, 3)
    a("s_nop 15"); a("s_nop 7")
    a("v_add_u32 v7, s42, v2"); a("v_mul_u32_u24 v7, 1792, v7"); a("v_lshlrev_b32 v8, 3, v3"); a("v_add_u32 v7, v7, v8")
    a(f"s_lshl_b32 s43, s55, 1"); a(f"s_add_u32 s43, s43, {WS_Z1}")
    for j in range(7):
        for i in range(2):
            acc = 100 + 8*j + 4*i
            for r in range(4): gelu(acc + r)
            a(f"v_cvt_pk_bf16_f32 v32, v{acc}, v{acc+1}"); a(f"v_cvt_pk_bf16_f32 v33, v{acc+2}, v{acc+3}")
            a(f"buffer_store_dwordx2 v[32:33], v7, s[28:31], s43 offen offset:{32*j + 16*1792*i}" if 32*j + 16*1792*i < 4096 else
              f"v_add_u32 v8, {16*1792*i}, v7")
            if 32*j + 16*1792*i >= 4096:
                a(f"buffer_store_dwordx2 v[32:33], v8, s[28:31], s43 offen offset:{32*j}")
    a("s_waitcnt vmcnt(0)"); stamp(a, 4); stamp_store(a, 5, 4)
    a("s_branch K2_END")
    a.label("K2_Z2")
    body(False)
    a("s_nop 15"); a("s_nop 7")
    a("s_sub_u32 s56, s55, 896")
    a("v_add_u32 v7, s56, v2"); a("v_lshlrev_b32 v7, 12, v7"); a("v_lshlrev_b32 v8, 3, v3"); a("v_add_u32 v7, v7, v8")
    a(f"s_lshl_b32 s43, s42, 1"); a(f"s_add_u32 s43, s43, {WS_Z2T}")
    for r in range(16): a(f"v_mov_b32 v{40+r}, 0")
    for j in range(7):
        for i in range(2):
            acc = 100 + 8*j + 4*i
            for r in range(4): gelu(acc + r)
            a(f"v_cvt_pk_bf16_f32 v32, v{acc}, v{acc+1}"); a(f"v_cvt_pk_bf16_f32 v33, v{acc+2}, v{acc+3}")
            a(f"v_add_u32 v8, {65536*j}, v7")
            a(f"buffer_store_dwordx2 v[32:33], v8, s[28:31], s43 offen offset:{32*i}")
            a(f"v_lshlrev_b32 v34, 16, v32"); a(f"v_and_b32 v35, 0xffff0000, v32"); a(f"v_lshlrev_b32 v36, 16, v33"); a(f"v_and_b32 v37, 0xffff0000, v33")
            for r in range(4):
                a(f"v_add_f32 v{40+4*i+r}, v{40+4*i+r}, v{34+r}"); a(f"v_fmac_f32 v{48+4*i+r}, v{34+r}, v{34+r}")
    a("s_nop 1")
    for r in range(16):
        for rot in (8, 4, 2, 1):
            a(f"v_add_f32_dpp v{40+r}, v{40+r}, v{40+r} row_ror:{rot} row_mask:0xf bank_mask:0xf"); a("s_nop 1")
    a("v_cmp_eq_u32 vcc, 0, v2"); a("s_and_saveexec_b64 s[44:45], vcc")
    a("s_lshl_b32 s56, s54, 8"); a(f"s_add_u32 s56, s56, {K2_STAT}")
    a("v_lshlrev_b32 v8, 5, v3"); a("v_add_u32 v8, s56, v8")
    for i in range(2):
        for r in range(4):
            a(f"v_mov_b32 v34, v{40+4*i+r}"); a(f"v_mov_b32 v35, v{48+4*i+r}")
            a(f"ds_write_b64 v8, v[34:35] offset:{128*i + 8*r}")
    a("s_mov_b64 exec, s[44:45]")
    a("s_waitcnt lgkmcnt(0)"); a("s_barrier")
    a("v_cmp_gt_u32 vcc, 32, v0"); a("s_and_saveexec_b64 s[44:45], vcc"); a("s_cbranch_execz K2_END")
    a(f"v_lshlrev_b32 v8, 3, v0"); a(f"v_add_u32 v8, {K2_STAT}, v8")
    for w in range(4): a(f"ds_read_b64 v[{34+2*w}:{35+2*w}], v8 offset:{256*w}")
    a("s_waitcnt lgkmcnt(0)")
    a("v_add_f32 v34, v34, v36"); a("v_add_f32 v34, v34, v38"); a("v_add_f32 v34, v34, v40")
    a("v_add_f32 v35, v35, v37"); a("v_add_f32 v35, v35, v39"); a("v_add_f32 v35, v35, v41")
    a("s_sub_u32 s56, s40, 2"); a("s_lshl_b32 s56, s56, 14"); a("s_lshl_b32 s57, s42, 3"); a("s_add_u32 s56, s56, s57"); a(f"s_add_u32 s56, s56, {WS_STAT}")
    a("v_lshlrev_b32 v8, 3, v0")
    a("buffer_store_dwordx2 v[34:35], v8, s[28:31], s56 offen")
    a.label("K2_END")
    a("s_endpgm")
    return name, 256
```

```python
from common import *
RS = 144

def lds_size(k3):
    TB = 128 if k3 else 64
    return 2 * (64 + TB) * RS + (16384 if k3 else 0)

def gen_gemm(a, k3, PD=4):
    name = "k3_gemm2_kernel" if k3 else "k4_gemm3_kernel"
    L = "K3" if k3 else "K4"
    TB = 128 if k3 else 64
    NCH = 32 if k3 else 14
    strideA = 4096 if k3 else 1792
    strideB = 4096 if k3 else 1792
    nA, nB = 2, TB // 32
    BUFSZ = (64 + TB) * RS
    STAT = 0
    B0 = 16384 if k3 else 0
    JB = TB // 32
    kernel_begin(a, name)
    a("s_cmp_ge_u32 s2, 224"); a(f"s_cbranch_scc1 {L}_END")
    a("s_load_dwordx2 s[14:15], s[0:1], %d" % KA['ws'])
    if k3: stamp(a, 0)
    if k3:
        a("s_load_dwordx4 s[4:7], s[0:1], %d" % KA['w_sp'])
        a("s_and_b32 s40, s2, 3"); a("s_lshl_b32 s40, s40, 2")
        a("s_lshr_b32 s41, s2, 3"); a("s_and_b32 s42, s41, 3"); a("s_add_u32 s40, s40, s42")
        a("s_lshr_b32 s41, s41, 2"); a("s_bfe_u32 s42, s2, 0x10002"); a("s_mul_i32 s42, s42, 7"); a("s_add_u32 s41, s41, s42")
        a("s_lshl_b32 s42, s40, 7")
        a("s_lshl_b32 s43, s41, 6")
    else:
        a("s_load_dwordx2 s[6:7], s[0:1], %d" % KA['out'])
        a("s_lshr_b32 s40, s2, 3"); a("s_mul_i32 s41, s40, 37"); a("s_lshr_b32 s41, s41, 8")
        a("s_mul_i32 s42, s41, 7"); a("s_sub_u32 s43, s40, s42")
        a("s_and_b32 s40, s2, 7"); a("s_lshl_b32 s40, s40, 2"); a("s_add_u32 s40, s40, s41")
        a("s_lshl_b32 s42, s40, 6")
        a("s_lshl_b32 s43, s43, 6")
    a("s_waitcnt lgkmcnt(0)")
    srd(a, 28, 14, WS_SIZE)
    if k3:
        srd(a, 16, 4, 2048 * 4096)
    a("v_lshrrev_b32 v1, 3, v0"); a("v_and_b32 v2, 7, v0"); a("v_lshlrev_b32 v2, 4, v2")
    a("v_add_u32 v3, s43, v1"); a(f"v_mul_u32_u24 v3, {strideA}, v3"); a("v_add_u32 v3, v3, v2")
    a(f"v_add_u32 v4, {32*strideA}, v3")
    a("v_add_u32 v5, s42, v1"); a(f"v_mul_u32_u24 v5, {strideB}, v5"); a("v_add_u32 v5, v5, v2")
    for i in range(1, nB):
        a(f"v_add_u32 v{5+i}, {32*i*strideB}, v5")
    a(f"s_mov_b32 s44, {WS_Z2T if k3 else WS_WOUTT}")
    a(f"s_mov_b32 s45, {0 if k3 else WS_P}")
    BS = "s[16:19]" if k3 else "s[28:31]"
    SET0 = 96
    SS = 4 * (nA + nB)
    def gload(ch):
        st = SET0 + SS * (ch % PD)
        a(f"buffer_load_dwordx4 v[{st}:{st+3}], v3, s[28:31], s44 offen")
        a(f"buffer_load_dwordx4 v[{st+4}:{st+7}], v4, s[28:31], s44 offen")
        for i in range(nB):
            a(f"buffer_load_dwordx4 v[{st+8+4*i}:{st+11+4*i}], v{5+i}, {BS}, s45 offen")
        a("s_add_u32 s44, s44, 128"); a("s_add_u32 s45, s45, 128")
    a(f"v_mul_u32_u24 v9, {RS}, v1"); a("v_add_u32 v9, v9, v2"); a("v_add_u32 v64, 0x8000, v9")
    a("v_lshrrev_b32 v11, 6, v0"); a("s_nop 0"); a("v_readfirstlane_b32 s54, v11")
    a("s_and_b32 s55, s54, 1"); a("s_lshr_b32 s56, s54, 1")
    a("v_and_b32 v11, 63, v0"); a("v_and_b32 v12, 15, v11"); a("v_lshrrev_b32 v13, 4, v11")
    a(f"s_mul_i32 s57, s55, {TB//2}"); a("s_add_u32 s57, s57, s42"); a("v_add_u32 v14, s57, v12")
    a("s_lshl_b32 s57, s56, 5"); a("s_add_u32 s57, s57, s43"); a("v_lshlrev_b32 v15, 2, v13"); a("v_add_u32 v15, s57, v15")
    EP = 66
    if k3:
        a("v_lshlrev_b32 v10, 6, v0")
        a(f"s_mov_b32 s46, {WS_STAT}"); a(f"s_mov_b32 s47, {WS_STAT + 16384}")
        for i in range(4):
            a(f"buffer_load_dwordx4 v[{16+4*i}:{19+4*i}], v10, s[28:31], s46 offen offset:{16*i}")
        for i in range(4):
            a(f"buffer_load_dwordx4 v[{32+4*i}:{35+4*i}], v10, s[28:31], s47 offen offset:{16*i}")
    for ch in range(PD):
        gload(ch)
    if k3:
        srd(a, 20, 6, 4096)
        a("v_lshlrev_b32 v65, 1, v14")
        for j in range(JB):
            a(f"buffer_load_ushort v{EP+16+j}, v65, s[20:23], 0 offen offset:{32*j}")
        a("v_mul_u32_u24 v65, 1792, v14"); a("v_lshlrev_b32 v15, 1, v15"); a("v_add_u32 v65, v65, v15")
        a(f"s_mov_b32 s58, {WS_Z1}")
        for j in range(JB):
            a(f"v_add_u32 v15, {16*1792*j}, v65")
            for i in range(2):
                a(f"buffer_load_dwordx2 v[{EP+4*j+2*i}:{EP+1+4*j+2*i}], v15, s[28:31], s58 offen offset:{32*i}")
        NEP = JB + 2 * JB
    else:
        srd(a, 20, 6, 2048 * 896)
        a("v_lshlrev_b32 v65, 2, v15"); a(f"s_movk_i32 s59, {WS_MOD + 5*1792}")
        for i in range(2):
            a(f"buffer_load_dwordx4 v[{EP+16+4*i}:{EP+19+4*i}], v65, s[28:31], s59 offen offset:{64*i}")
        a("v_mul_u32_u24 v65, 896, v14"); a("v_lshlrev_b32 v15, 1, v15"); a("v_add_u32 v65, v65, v15")
        a(f"s_mov_b32 s58, {WS_X1}")
        for j in range(JB):
            a(f"v_add_u32 v15, {16*896*j}, v65")
            for i in range(2):
                a(f"buffer_load_dwordx2 v[{EP+4*j+2*i}:{EP+1+4*j+2*i}], v15, s[28:31], s58 offen offset:{32*i}")
        NEP = 2 + 2 * JB
    if k3:
        a(f"s_waitcnt vmcnt({(nA+nB)*PD + NEP})")
        for e in range(8):
            a(f"v_add_f32 v11, v{16+2*e}, v{32+2*e}"); a(f"v_add_f32 v15, v{17+2*e}, v{33+2*e}")
            a("v_mul_f32 v11, " + fbits(1.0/896) + ", v11")
            a("v_mul_f32 v15, " + fbits(1.0/896) + ", v15")
            a("v_fma_f32 v15, -v11, v11, v15"); a("v_add_f32 v15, " + fbits(1e-5) + ", v15")
            a("v_rsq_f32 v15, v15"); a("s_nop 0")
            a(f"v_mov_b32 v{48+e}, v15"); a(f"v_mul_f32 v{56+e}, v11, v15"); a(f"v_sub_f32 v{56+e}, 0, v{56+e}")
        a("v_lshlrev_b32 v10, 5, v0")
        a(f"ds_write_b128 v10, v[48:51] offset:{STAT}"); a(f"ds_write_b128 v10, v[52:55] offset:{STAT+16}")
        a(f"ds_write_b128 v10, v[56:59] offset:{STAT+8192}"); a(f"ds_write_b128 v10, v[60:63] offset:{STAT+8192+16}")
        a("v_lshlrev_b32 v10, 5, v0"); a("v_and_b32 v10, 0xe0, v10")
        a("s_waitcnt lgkmcnt(0)"); a("s_barrier")
    def stat_reads(ch):
        so = STAT + ch * 256
        a(f"ds_read_b128 v[16:19], v10 offset:{so}"); a(f"ds_read_b128 v[20:23], v10 offset:{so+16}")
        a(f"ds_read_b128 v[24:27], v10 offset:{so+8192}"); a(f"ds_read_b128 v[28:31], v10 offset:{so+8192+16}")
    def norm_ops(ch):
        st = SET0 + SS * (ch % PD); o = []
        for i in range(2):
            for d in range(4):
                src = st + 4*i + d
                o += [f"v_lshlrev_b32 v11, 16, v{src}", f"v_and_b32 v15, 0xffff0000, v{src}",
                      f"v_fma_f32 v11, v11, v{16+2*d}, v{24+2*d}", f"v_fma_f32 v15, v15, v{17+2*d}, v{25+2*d}",
                      f"v_cvt_pk_bf16_f32 v{src}, v11, v15"]
        return o
    def writes(ch):
        st = SET0 + SS * (ch % PD)
        bo = B0 + (ch & 1) * BUFSZ
        a(f"ds_write_b128 v9, v[{st}:{st+3}] offset:{bo}")
        a(f"ds_write_b128 v9, v[{st+4}:{st+7}] offset:{bo + 32*RS}")
        for i in range(nB):
            o = bo + 64*RS + 32*i*RS
            a(f"ds_write_b128 v{9 if o < 65536 else 64}, v[{st+8+4*i}:{st+11+4*i}] offset:{o if o < 65536 else o - 0x8000}")
    a(f"s_waitcnt vmcnt({(nA+nB)*(PD-1) + NEP})")
    if k3:
        stat_reads(0); a("s_waitcnt lgkmcnt(0)")
        for x in norm_ops(0): a(x)
    writes(0)
    a(f"v_mul_u32_u24 v14, {RS}, v12"); a("v_lshlrev_b32 v15, 4, v13"); a("v_add_u32 v14, v14, v15")
    a(f"s_mul_i32 s57, s56, {32*RS}"); a("v_add_u32 v15, s57, v14")
    a(f"s_mul_i32 s57, s55, {(TB//2)*RS}"); a(f"s_add_u32 s57, s57, {64*RS}"); a("v_add_u32 v14, s57, v14")
    a("v_mov_b32 v12, v15")
    ACC = 32
    FR = 200
    for r in range(8 * JB): a(f"v_mov_b32 v{ACC+r}, 0")
    a("s_waitcnt lgkmcnt(0)"); a("s_barrier")
    def freads(ch, ks):
        bo = B0 + (ch & 1) * BUFSZ
        f = FR + 24 * ks
        for i in range(2):
            a(f"ds_read_b128 v[{f+4*i}:{f+4*i+3}], v12 offset:{bo + 16*i*RS + 64*ks}")
        for j in range(JB):
            a(f"ds_read_b128 v[{f+8+4*j}:{f+11+4*j}], v14 offset:{bo + 16*j*RS + 64*ks}")
    def mfmas(ks):
        f = FR + 24 * ks; o = []
        for j in range(JB):
            for i in range(2):
                acc = ACC + 8*j + 4*i
                o.append(f"v_mfma_f32_16x16x32_bf16 v[{acc}:{acc+3}], v[{f+4*i}:{f+4*i+3}], v[{f+8+4*j}:{f+11+4*j}], v[{acc}:{acc+3}]")
        return o
    for ch in range(NCH):
        if k3 and ch in (0, 8, 16, 24): stamp(a, 1 + ch // 8)
        nxt = ch + 1 < NCH
        if not os.environ.get('NOFR'): freads(ch, 0)
        if k3 and nxt and not os.environ.get('NOST'): stat_reads(ch + 1)
        if ch + PD < NCH and not os.environ.get('NOLD'): gload(ch + PD)
        m1 = mfmas(1) if ch > 0 and not os.environ.get('NOMF') else []
        va = norm_ops(ch + 1) if (k3 and nxt and not os.environ.get('NOVA')) else []
        for x in m1[:2]: a(x)
        m1 = m1[2:]
        if nxt:
            outstanding = min(PD - 1, NCH - 2 - ch)
            a(f"s_waitcnt vmcnt({(nA+nB)*outstanding}) lgkmcnt(0)")
        per = (len(va) + max(len(m1), 1) - 1) // max(len(m1), 1)
        while m1 or va:
            if m1: a(m1.pop(0))
            for _ in range(per):
                if va: a(va.pop(0))
        if nxt and not os.environ.get('NOWR'): writes(ch + 1)
        if not os.environ.get('NOFR'): freads(ch, 1)
        a(f"s_waitcnt lgkmcnt({(2+JB) + ((nA+nB) if nxt else 0)})")
        for x in (mfmas(0) if not os.environ.get('NOMF') else []): a(x)
        a("s_waitcnt lgkmcnt(0)")
        if nxt: a("s_barrier")
    for x in mfmas(1): a(x)
    if k3: stamp(a, 5)
    a("s_nop 15"); a("s_nop 7")
    a("s_waitcnt vmcnt(0)")
    if k3:
        a(f"s_mov_b32 s59, {WS_P}")
        for j in range(JB):
            a(f"v_lshlrev_b32 v{EP+16+j}, 16, v{EP+16+j}")
            a(f"v_add_u32 v7, {16*1792*j}, v65")
            for i in range(2):
                acc = ACC + 8*j + 4*i; z = EP + 4*j + 2*i
                for p in range(2):
                    a(f"v_cvt_pk_bf16_f32 v16, v{acc+2*p}, v{acc+2*p+1}")
                    a("v_lshlrev_b32 v17, 16, v16"); a("v_and_b32 v18, 0xffff0000, v16")
                    a(f"v_add_f32 v17, v17, v{EP+16+j}"); a(f"v_add_f32 v18, v18, v{EP+16+j}")
                    a("v_cvt_pk_bf16_f32 v16, v17, v18")
                    a("v_lshlrev_b32 v17, 16, v16"); a("v_and_b32 v18, 0xffff0000, v16")
                    a(f"v_lshlrev_b32 v19, 16, v{z+p}"); a(f"v_and_b32 v20, 0xffff0000, v{z+p}")
                    a("v_mul_f32 v17, v17, v19"); a("v_mul_f32 v18, v18, v20")
                    a(f"v_cvt_pk_bf16_f32 v{z+p}, v17, v18")
                a(f"buffer_store_dwordx2 v[{z}:{z+1}], v7, s[28:31], s59 offen offset:{32*i}")
    else:
        for j in range(JB):
            a(f"v_add_u32 v7, {16*896*j}, v65")
            for i in range(2):
                acc = ACC + 8*j + 4*i; z = EP + 4*j + 2*i
                for p in range(2):
                    a(f"v_cvt_pk_bf16_f32 v16, v{acc+2*p}, v{acc+2*p+1}")
                    a("v_lshlrev_b32 v17, 16, v16"); a("v_and_b32 v18, 0xffff0000, v16")
                    a(f"v_mul_f32 v17, v17, v{EP+16+4*i+2*p}"); a(f"v_mul_f32 v18, v18, v{EP+17+4*i+2*p}")
                    a("v_cvt_pk_bf16_f32 v16, v17, v18")
                    a("v_lshlrev_b32 v17, 16, v16"); a("v_and_b32 v18, 0xffff0000, v16")
                    a(f"v_lshlrev_b32 v19, 16, v{z+p}"); a(f"v_and_b32 v20, 0xffff0000, v{z+p}")
                    a("v_add_f32 v17, v17, v19"); a("v_add_f32 v18, v18, v20")
                    a(f"v_cvt_pk_bf16_f32 v{z+p}, v17, v18")
                a(f"buffer_store_dwordx2 v[{z}:{z+1}], v7, s[20:23], 0 offen offset:{32*i}")
    if k3:
        a("s_waitcnt vmcnt(0)"); stamp(a, 6); stamp_store(a, 7, 5)
    a.label(f"{L}_END")
    a("s_endpgm")
    return name, 256
```
